```python
import torch

def _softmax(x, axis=-1):
    return torch.softmax(x, dim=axis)
def _gelu(x):
    return torch.nn.functional.gelu(x, approximate="tanh")
def _silu(x):
    return torch.nn.functional.silu(x)
def _sigmoid(x):
    return torch.sigmoid(x)
def _layernorm(x, axis=-1, eps=1e-5):
    m = x.mean(dim=axis, keepdim=True)
    v = x.var(dim=axis, keepdim=True, unbiased=False)
    return (x - m) / torch.sqrt(v + eps)
def _scatter_add(tgt, idx, src, axis=0):
    return tgt.clone().index_add_(axis, idx, src)
def _segment_sum(src, seg, n):
    out = torch.zeros((n,) + src.shape[1:], dtype=src.dtype)
    return out.index_add_(0, seg, src)
def _pad(x, pw):
    flat = tuple(v for pair in reversed(pw) for v in pair)
    return torch.nn.functional.pad(x, flat)

kernel_name = 'gated_mix__linear_attn_block__linear_kernel_hedgehog__prompt'

def setup_inputs():

    _w = (lambda a: (lambda t: t.to(torch.bfloat16) if t.is_floating_point() else t)(torch.as_tensor(a)))
    def _A_setup():
        B, S, D = 1, 2048, 512
        return {
            "x": _w((lambda *s: torch.randn(*s, dtype=torch.bfloat16) * 0.05)(B, S, D)),
            "wqkv": _w((lambda *s: torch.randn(*s, dtype=torch.bfloat16) * 0.4)(D, 3 * D)),
            "wo": _w((lambda *s: torch.randn(*s, dtype=torch.bfloat16) * 0.1)(D, D)),
        }
    _A_in = _A_setup()

    def _B_setup():
        B, S, D, H = 1, 2048, 512, 32
        Dh = D // H
        return {
            "x": _w((lambda *s: torch.randn(*s, dtype=torch.bfloat16) * 0.05)(B, S, D)),
            "wqkv": _w((lambda *s: torch.randn(*s, dtype=torch.bfloat16) * 0.8)(D, 3 * D)),
            "w_phi": _w((lambda *s: torch.randn(*s, dtype=torch.bfloat16) * 0.8)(H, Dh, Dh) * (Dh ** -0.5)),
            "wo": _w((lambda *s: torch.randn(*s, dtype=torch.bfloat16) * 0.05)(D, D)),
        }
    _B_in = _B_setup()

    return {
        "A_x": _A_in["x"],
        "A_wqkv": _A_in["wqkv"],
        "A_wo": _A_in["wo"],
        "B_x": _B_in["x"],
        "B_wqkv": _B_in["wqkv"],
        "B_w_phi": _B_in["w_phi"],
        "B_wo": _B_in["wo"],
        "gate_w": _w((lambda *s: torch.randn(*s, dtype=torch.bfloat16) * 0.05)(512) * 16.0),
    }

def reference(A_x, A_wqkv, A_wo, B_x, B_wqkv, B_w_phi, B_wo, gate_w):
    def _A_ref(x, wqkv, wo):
        B, S, D = x.shape
        H = 32; Dh = D // H
        qkv = (lambda x, *d: x.permute(*d))((x @ wqkv).reshape(B, S, 3, H, Dh), 2, 0, 3, 1, 4)
        q, k, v = qkv[0], qkv[1], qkv[2]
        phi = lambda t: torch.where(t > 0, t + 1, torch.exp(t)) + 1e-6
        pq, pk = phi(q), phi(k)
        kv = torch.einsum("bhsd,bhse->bhde", pk, v)
        z = torch.einsum("bhsd->bhd", pk)
        num = torch.einsum("bhqd,bhde->bhqe", pq, kv)
        den = torch.einsum("bhqd,bhd->bhq", pq, z)[..., None] + 1e-6
        o = num / den
        return (lambda x, *d: x.permute(*d))(o, 0, 2, 1, 3).reshape(B, S, D) @ wo

    def _B_ref(x, wqkv, w_phi, wo):
        B, S, D = x.shape
        H = 32; Dh = D // H
        qkv = (lambda x, *d: x.permute(*d))((x @ wqkv).reshape(B, S, 3, H, Dh), 2, 0, 3, 1, 4)
        q, k, v = qkv[0], qkv[1], qkv[2]
        pq = torch.einsum("bhsd,hdf->bhsf", q, w_phi)
        pk = torch.einsum("bhsd,hdf->bhsf", k, w_phi)
        phi_q = torch.concatenate([_softmax(pq, axis=-1), _softmax(-pq, axis=-1)], axis=-1)
        phi_k = torch.concatenate([_softmax(pk, axis=-1), _softmax(-pk, axis=-1)], axis=-1)
        kv = torch.einsum("bhsf,bhsd->bhfd", phi_k, v)
        z  = torch.einsum("bhsf->bhf", phi_k)
        num = torch.einsum("bhqf,bhfd->bhqd", phi_q, kv)
        den = torch.einsum("bhqf,bhf->bhq", phi_q, z)[..., None] + 1e-6
        o = num / den
        return (lambda x, *d: x.permute(*d))(o, 0, 2, 1, 3).reshape(B, S, D) @ wo

    x = A_x
    g = _sigmoid((x * gate_w).sum(-1, keepdims=True))
    a = _A_ref(x, A_wqkv, A_wo)
    b = _B_ref(x, B_wqkv, B_w_phi, B_wo)
    return g * a + (1 - g) * b
```

```python
class Asm:
    def __init__(self):
        self.lines = []
        self._uid = 0
    def __call__(self, s=""):
        for l in s.split("\n"):
            l = l.strip()
            if l: self.lines.append("    " + l if not l.endswith(":") else l)
    def c(self, s): self.lines.append("    ; " + s)
    def label(self, name): self.lines.append(name + ":")
    def uid(self, p="L"):
        self._uid += 1
        return "%s_%d" % (p, self._uid)
    def text(self): return "\n".join(self.lines) + "\n"

def kernel_header(name):
    return (".globl %s\n.p2align 8\n.type %s,@function\n%s:\n" % (name, name, name))

def kernel_desc(name, vgpr=256, sgpr=102, accum=256):
    return (".amdhsa_kernel %s\n"
            "  .amdhsa_next_free_vgpr %d\n"
            "  .amdhsa_next_free_sgpr %d\n"
            "  .amdhsa_accum_offset %d\n"
            "  .amdhsa_group_segment_fixed_size 0\n"
            "  .amdhsa_kernarg_size 88\n"
            "  .amdhsa_user_sgpr_count 2\n"
            "  .amdhsa_user_sgpr_kernarg_segment_ptr 1\n"
            "  .amdhsa_system_sgpr_workgroup_id_x 1\n"
            "  .amdhsa_float_denorm_mode_32 3\n"
            ".end_amdhsa_kernel\n") % (name, vgpr, sgpr, accum)

def module(launch_lines, kernels):
    out = []
    for l in launch_lines: out.append(l)
    out.append('.amdgcn_target "amdgcn-amd-amdhsa--gfx950"')
    out.append(".text")
    txt = "\n".join(out) + "\n"
    for (name, body, v, s, a) in kernels:
        txt += kernel_header(name) + body
    txt += '.section .rodata,"a"\n'
    for (name, body, v, s, a) in kernels:
        txt += ".p2align 6\n" + kernel_desc(name, v, s, a)
    return txt
```

```python
import re
TRANS = ("v_exp_f32", "v_log_f32", "v_rcp_f32", "v_rsq_f32", "v_sqrt_f32", "v_sin_f32", "v_cos_f32", "v_rcp_iflag_f32")
def regs_of(tok):
    tok = tok.strip()
    neg = tok.lstrip("-")
    m = re.fullmatch(r"abs\((.*)\)", neg)
    if m: neg = m.group(1)
    m = re.fullmatch(r"([vsa])\[(\d+):(\d+)\]", neg)
    if m: return [(m.group(1), i) for i in range(int(m.group(2)), int(m.group(3)) + 1)]
    m = re.fullmatch(r"([vsa])(\d+)", neg)
    if m: return [(m.group(1), int(m.group(2)))]
    if neg == "vcc": return [("s", "vcc")]
    if neg == "exec": return [("s", "exec")]
    if neg == "m0": return [("s", "m0")]
    return []
class I:
    def __init__(self, text):
        self.text = text
        t = text.split(";")[0].strip()
        self.label = None; self.op = None; self.ops = []
        if t.endswith(":"):
            self.label = t[:-1]; return
        if not t: return
        p = t.split(None, 1)
        self.op = p[0]
        rest = p[1] if len(p) > 1 else ""
        toks = [x.strip() for x in rest.split(",")] if rest else []
        self.mods = ""
        if toks:
            l = toks[-1].split(None, 1)
            toks[-1] = l[0]; self.mods = l[1] if len(l) > 1 else ""
        self.ops = toks
        op = self.op
        self.kind = "other"; self.w = []; self.r = []
        R = lambda i: regs_of(toks[i]) if i < len(toks) else []
        if op.startswith("v_mfma"):
            self.kind = "mfma"; self.w = R(0); self.A = R(1); self.B = R(2); self.C = R(3); self.r = self.A + self.B + self.C
            self.passes = 8 if "32x32" in op else 4
        elif op.startswith("v_"):
            self.kind = "valu"
            base = op.replace("_e32", "").replace("_e64", "")
            self.trans = base in TRANS
            self.dl = base.startswith("v_dot")
            self.dpp = "row_" in self.mods or "quad_perm" in self.mods or op.endswith("_dpp")
            self.perm = base.startswith("v_permlane")
            self.rdlane = base.startswith("v_readfirstlane") or base.startswith("v_readlane")
            if self.perm:
                self.w = R(0) + R(1); self.r = R(0) + R(1)
            elif base.startswith("v_cmp"):
                self.w = R(0); self.r = sum((R(i) for i in range(1, len(toks))), [])
            elif base.startswith(("v_add_co", "v_sub_co", "v_addc_co")):
                self.w = R(0) + R(1); self.r = sum((R(i) for i in range(2, len(toks))), [])
            else:
                self.w = R(0); self.r = sum((R(i) for i in range(1, len(toks))), [])
                if base.startswith(("v_fmac", "v_dot2c", "v_pk_fmac")): self.r += R(0)
                if base == "v_cndmask_b32" and len(toks) == 3: self.r += [("s", "vcc")]
                if base.startswith("v_writelane"): self.r += R(0)
        elif op.startswith("ds_"):
            self.kind = "ds"
            if op.startswith("ds_read") or op.startswith("ds_bpermute") or op.startswith("ds_swizzle"):
                self.w = R(0); self.r = sum((R(i) for i in range(1, len(toks))), [])
            else:
                self.r = sum((R(i) for i in range(len(toks))), [])
        elif op.startswith(("buffer_", "global_")):
            self.kind = "vmem"
            self.lds = " lds" in (" " + self.mods)
            if op in ("buffer_inv", "buffer_wbl2"): pass
            elif "load" in op and not self.lds:
                self.w = R(0); self.r = sum((R(i) for i in range(1, len(toks))), [])
            else:
                self.r = sum((R(i) for i in range(len(toks))), [])
                if self.lds: self.r += [("s", "m0")]
            self.wide_store = ("store_dwordx4" in op or "store_dwordx3" in op)
            self.data = R(0) if "store" in op and op.startswith("buffer") else []
        elif op.startswith("s_"):
            self.kind = "salu"
            if op.startswith(("s_cmp", "s_cbranch", "s_branch", "s_waitcnt", "s_barrier", "s_nop", "s_sleep", "s_setprio", "s_endpgm")):
                self.r = sum((R(i) for i in range(len(toks))), [])
            else:
                self.w = R(0); self.r = sum((R(i) for i in range(1, len(toks))), [])
                if "saveexec" in op: self.w += [("s", "exec")]
    def states(self):
        if self.op is None: return 0
        if self.op == "s_nop": return int(self.ops[0], 0) + 1
        return 1
def need(p, c):
    n = 0
    ov = lambda a, b: bool(set(a) & set(b))
    if p.kind == "valu":
        pv = [x for x in p.w if x[0] in "va"]; ps = [x for x in p.w if x[0] == "s"]
        if c.kind == "mfma" and ov(pv, c.r): n = max(n, 2)
        if c.kind == "valu":
            if c.perm and ov(pv, c.r): n = max(n, 2)
            if c.dpp and ov(pv, c.r): n = max(n, 2)
            if c.rdlane and ov(pv, c.r): n = max(n, 1)
            if p.trans and not c.trans and ov(pv, c.r): n = max(n, 1)
            if ov(ps, c.r): n = max(n, 4 if c.rdlane else 2)
            if p.dl and ov(pv, c.r + c.w):
                same = c.op == p.op
                if same and len(c.ops) >= 4 and ov(pv, regs_of(c.ops[3])) and not ov(pv, regs_of(c.ops[1]) + regs_of(c.ops[2])): pass
                elif same and c.op.startswith("v_dot2c") and ov(pv, c.w) and not ov(pv, regs_of(c.ops[1]) + regs_of(c.ops[2])): pass
                else: n = max(n, 3)
        if p.dl and c.kind in ("ds", "vmem", "mfma") and ov(pv, c.r): n = max(n, 3)
        if p.trans and c.kind in ("ds", "vmem") and ov(pv, c.r): n = max(n, 1)
        if c.kind == "vmem" and ov(ps, c.r): n = max(n, 5)
        if c.kind == "salu" and ov(ps, c.r): n = max(n, 1)
    elif p.kind == "mfma":
        k = {4: (6, 8, 3), 8: (10, 12, 7)}[p.passes]
        if c.kind == "mfma":
            if ov(p.w, c.A + c.B): n = max(n, k[1])
            if ov(p.w, c.C):
                if not (p.w == c.C and p.passes == c.passes): n = max(n, k[0])
            elif ov(p.w, c.w): n = max(n, k[0])
        elif c.kind in ("valu", "ds", "vmem"):
            if ov(p.w, c.r + c.w): n = max(n, k[1])
            if c.kind == "valu" and ov(p.C, c.w): n = max(n, k[2])
    elif p.kind == "vmem":
        if getattr(p, "wide_store", False) and ov(p.data, c.w):
            n = max(n, 2 if c.kind == "valu" else 1)
    elif p.kind == "salu":
        if ("s", "m0") in p.w and c.kind == "vmem" and getattr(c, "lds", False): n = max(n, 1)
    return n
def fix(lines, verbose=True, maxdist=14):
    ins = [I(l) for l in lines]
    labels = {x.label: i for i, x in enumerate(ins) if x.label}
    preds_extra = {}
    for i, x in enumerate(ins):
        if x.op and (x.op.startswith("s_cbranch") or x.op == "s_branch"):
            preds_extra.setdefault(labels[x.ops[0]], []).append(i)
    pad = [0] * len(ins)
    total = 0; sites = []
    def walk(i, c):
        worst = 0
        stack = [(i, 0)]; seen = {}
        while stack:
            j, d = stack.pop()
            ps = []
            if j > 0 and not (ins[j - 1].op in ("s_branch", "s_endpgm")): ps.append(j - 1)
            if ins[j].label: ps += preds_extra.get(j, [])
            dd = d + pad[j] if j != i else d
            for q in ps:
                x = ins[q]
                if x.op is not None:
                    r = need(x, c)
                    if r > dd: worst = max(worst, r - dd)
                nd = dd + x.states()
                if nd >= maxdist: continue
                if seen.get(q, 1 << 30) <= nd: continue
                seen[q] = nd
                stack.append((q, nd))
        return worst
    for i, c in enumerate(ins):
        if c.op is None or c.op == "s_nop": continue
        w = walk(i, c)
        if w > 0:
            pad[i] = w; total += w; sites.append((i, w, c.text.strip()))
    out = []
    for i, x in enumerate(ins):
        n = pad[i]
        while n > 0:
            k = min(n, 16); out.append("    s_nop %d" % (k - 1)); n -= k
        out.append(x.text)
    if verbose:
        print("hazard pass: %d sites, %d wait states inserted" % (len(sites), total))
    return out, sites
```

```python
import sys
sys.path.insert(0, "work")
from asmgen import Asm, module
import hazard

KN = "gated_mix__linear_attn_block__linear_kernel_hedgehog__prompt_kernel"

def vr(n, k=1): return "v%d" % n if k == 1 else "v[%d:%d]" % (n, n + k - 1)
def sr(n, k=1): return "s%d" % n if k == 1 else "s[%d:%d]" % (n, n + k - 1)

WS_E = 0x0; WS_F1 = 0x1000; WS_F2 = 0x2000; WS_G = 0x4000
WS_KVB = 0x10000; WS_ZB = 0x90000; WS_KVA = 0xA0000; WS_ZA = 0xE0000
WS_O = 0x100000; WS_SIZE = 0x500000; WS_STAMP = 0x600000
SLOT = 32768
X1KV = 1 * SLOT; X1Z = 2 * SLOT
X2 = 4 * SLOT; X2Z = X2 + 16384
OT = 0; RBUF = 4 * SLOT
S_X, S_WA, S_WB, S_OA, S_OB, S_WS, S_OUT, S_PHI, S_GATE = 4, 8, 12, 16, 20, 24, 28, 32, 36
sRB, sHG, sTY, sROT, sW, sP, sRG, sRS, sCT, sROT3 = 40, 41, 42, 43, 44, 45, 46, 47, 48, 49
sTAG = 50; sL = 52; sEPS = 53; sT0, sT1, sT2, sSPIN = 54, 55, 56, 57; sEX = 58
sXOFF = 60; sWOFF = 68; sM2K = 76; sM1K = 77; sT3 = 78; sT4 = 79
sSTAMP = 80
vLANE = 0
vXa, vXb, vWa, vWb, vQ, vOa, vOb = 1, 2, 3, 4, 5, 6, 7
vRX = 8; vRW = 10; vRQ = 14; vRO = 16; vL16 = 18; vT = 19
vID = 20; vWPHI = 22
vA = 26
vTMP = 32
vWF = 64; vACC = 96; vX = 128

class VM:
    def __init__(self, a): self.a = a; self.q = []
    def issue(self, tag, cond=False): self.q.append((tag, cond))
    def wait(self, tag):
        idx = max(i for i, (t, c) in enumerate(self.q) if t == tag)
        n = sum(1 for (t, c) in self.q[idx + 1:] if not c)
        assert n < 64
        self.a("s_waitcnt vmcnt(%d)" % n)
    def copy(self, a=None):
        v = VM(a or self.a); v.q = list(self.q); return v

class Gen:
    def __init__(self, stamps=False, stop=None):
        self.a = Asm(); self.stamps = stamps; self.nst = 0; self.stop = stop; self.stnames = []
    def stamp(self, name):
        if not self.stamps: return
        i = self.nst; assert i < 22
        self.nst += 1; self.stnames.append(name)
        self.a("s_memtime s[%d:%d]" % (sT3, sT4))
        self.a("s_waitcnt lgkmcnt(0)")
        self.a("s_mov_b32 s%d, s%d" % (sSTAMP + i, sT3))

    def dma(self, vm, tag, voff, srd, soff, ldsbase_s, ldsimm, extra=""):
        a = self.a
        a("s_add_u32 m0, s%d, %d" % (ldsbase_s, ldsimm))
        if isinstance(soff, int):
            a("s_mov_b32 s%d, %d" % (sT0, soff)); so = "s%d" % sT0
        else:
            a("s_nop 0"); so = soff
        a("buffer_load_dwordx4 %s, %s, %s offen%s lds" % (vr(voff), sr(srd, 4), so, extra))
        vm.issue(tag)
    def dma_chunk(self, vm, c, ty):
        base = (c % 5) * SLOT
        wsrd = S_WA if ty == 0 else S_WB
        self.dma(vm, ("c", c), vXa, S_X, "s%d" % (sXOFF + c), sM2K, base)
        self.dma(vm, ("c", c), vXb, S_X, "s%d" % (sXOFF + c), sM2K, base + 1024)
        self.dma(vm, ("c", c), vWa, wsrd, "s%d" % (sWOFF + c), sM2K, base + 16384)
        self.dma(vm, ("c", c), vWb, wsrd, "s%d" % (sWOFF + c), sM2K, base + 16384 + 1024)
    def dma_wq(self, vm, half, ty):
        slot = 3 + half
        qsrd = S_WB if ty == 0 else S_WA
        for i in range(4):
            self.dma(vm, ("q", half), vQ, qsrd, "s%d" % (sWOFF + half * 4 + i), sM1K, slot * SLOT + i * 8192)
    def dma_wo(self, vm, i, slot):
        a = self.a
        a("s_add_u32 s%d, s%d, %d\ns_and_b32 s%d, s%d, 7\ns_lshl_b32 s%d, s%d, 16" % (sT1, sROT3, i, sT1, sT1, sT1, sT1))
        for (kh, srd) in ((0, S_OA), (1, S_OB)):
            self.dma(vm, ("o", i), vOa, srd, "s%d" % sT1, sM2K, slot * SLOT + kh * 16384)
            self.dma(vm, ("o", i), vOb, srd, "s%d" % sT1, sM2K, slot * SLOT + kh * 16384 + 1024)
    def read_wo(self, i, slot):
        out = []
        for pl in range(2):
            for ctile in range(2):
                r = vX + i * 16 + (pl * 2 + ctile) * 4
                for rd in range(2):
                    off = pl * 8192 + rd * 4096
                    out.append((r + 2 * rd, vRO + ctile, slot * SLOT + off))
        return out
    def emit_wo_reads(self, i, slot):
        a = self.a
        base = slot * SLOT
        hi = base if base + 12288 + 4096 > 65535 else 0
        if hi:
            a("v_add_u32 v%d, %d, v%d\nv_add_u32 v%d, %d, v%d" % (vA, hi, vRO, vA + 1, hi, vRO + 1))
        for (r, adr, off) in self.read_wo(i, slot):
            if hi: a("ds_read_b64_tr_b16 %s, v%d offset:%d" % (vr(r, 2), vA + (adr - vRO), off - hi))
            else: a("ds_read_b64_tr_b16 %s, v%d offset:%d" % (vr(r, 2), adr, off))

    def prologue(self):
        a = self.a
        a("s_cmp_ge_u32 s2, 256\ns_cbranch_scc1 L_end")
        if self.stamps: a("s_memrealtime s[100:101]")
        self.stamp("start")
        a("""s_load_dwordx4 s[60:63], s[0:1], 0
        s_load_dwordx2 s[64:65], s[0:1], 16
        s_load_dwordx4 s[68:71], s[0:1], 32
        s_load_dwordx4 s[72:75], s[0:1], 48
        s_load_dwordx2 s[76:77], s[0:1], 64
        s_load_dwordx2 s[78:79], s[0:1], 80""")
        a("""s_and_b32 s54, s2, 7
        s_lshr_b32 s55, s2, 3
        s_and_b32 s56, s55, 7
        s_lshr_b32 s57, s55, 3
        s_and_b32 s40, s54, 1
        s_lshl_b32 s40, s40, 3
        s_add_u32 s40, s40, s56
        s_lshr_b32 s41, s54, 1
        s_lshl_b32 s41, s41, 2
        s_add_u32 s41, s41, s57
        s_and_b32 s42, s41, 1
        s_lshr_b32 s41, s41, 1
        s_lshl_b32 s43, s57, 1
        s_add_u32 s43, s43, s56
        s_and_b32 s43, s43, 7
        s_lshl_b32 s47, s54, 3
        s_add_u32 s47, s47, s56
        s_mov_b32 s48, s57
        s_mov_b32 s49, s56""")
        a("""v_lshrrev_b32 v19, 6, v0
        v_and_b32 v0, 63, v0
        v_readfirstlane_b32 s44, v19
        v_lshlrev_b32 v18, 4, v0
        v_and_b32 v26, 15, v0
        v_lshrrev_b32 v27, 4, v0
        s_lshr_b32 s45, s44, 2
        s_and_b32 s46, s44, 3
        s_mov_b32 s52, 0x3fb8aa3b
        s_mov_b32 s53, 0x358637bd""")
        a("""v_lshrrev_b32 v28, 3, v0
        v_and_b32 v29, 7, v0
        s_lshl_b32 s54, s40, 7
        s_lshl_b32 s55, s44, 4
        s_add_u32 s54, s54, s55
        v_add_u32 v28, s54, v28
        v_lshlrev_b32 v28, 10, v28
        v_xor_b32 v30, v29, v27
        v_lshl_add_u32 v1, v30, 4, v28
        v_add_u32 v31, 4, v27
        v_xor_b32 v30, v29, v31
        v_lshl_add_u32 v2, v30, 4, v28
        v_add_u32 v2, 0x2000, v2""")
        a("""s_and_b32 s54, s44, 1
        s_lshl_b32 s55, s54, 2
        v_or_b32 v28, s55, v27
        v_lshrrev_b32 v29, 1, v26
        v_xor_b32 v28, v29, v28
        v_lshrrev_b32 v29, 2, v28
        v_lshlrev_b32 v29, 10, v29
        v_and_b32 v28, 3, v28
        v_lshl_add_u32 v29, v28, 5, v29
        v_and_b32 v28, 1, v0
        v_lshl_add_u32 v29, v28, 4, v29
        s_lshl_b32 s55, s44, 3
        v_add_u32 v28, s55, v27
        v_mul_u32_u24 v28, 0xc00, v28
        s_lshl_b32 s56, s41, 7
        s_add_u32 s56, s56, 1024
        v_add3_u32 v3, v28, v29, s56
        v_add_u32 v4, 0x3000, v3""")
        a("""s_lshl_b32 s55, s54, 1
        v_and_b32 v28, 1, v27
        v_or_b32 v28, s55, v28
        v_bfe_u32 v29, v0, 1, 2
        v_xor_b32 v28, v29, v28
        v_lshlrev_b32 v28, 5, v28
        v_and_b32 v29, 1, v0
        v_lshl_add_u32 v28, v29, 4, v28
        v_lshrrev_b32 v29, 3, v0
        s_lshl_b32 s55, s44, 3
        v_add_u32 v29, s55, v29
        v_mul_u32_u24 v29, 0xc00, v29
        s_lshl_b32 s56, s41, 7
        v_add3_u32 v5, v28, v29, s56""")
        a("s_waitcnt lgkmcnt(0)")
        def srd(d, b, size):
            a("s_mov_b32 s%d, s%d\ns_and_b32 s%d, s%d, 0xffff\ns_mov_b32 s%d, 0x%x\ns_mov_b32 s%d, 0x20000" % (d, b, d + 1, b + 1, d + 2, size, d + 3))
        srd(S_X, 60, 0x200000); srd(S_WA, 62, 0x180000); srd(S_WB, 68, 0x180000)
        srd(S_WS, 78, WS_STAMP + 0x10000 if self.stamps else WS_SIZE)
        a("s_load_dwordx2 s[50:51], s[78:79], 0")
        srd(S_PHI, 70, 0x4000); srd(S_OA, 64, 0x80000); srd(S_OB, 72, 0x80000); srd(S_GATE, 74, 0x400); srd(S_OUT, 76, 0x200000)
        for c in range(8):
            a("s_add_u32 s54, s43, %d\ns_and_b32 s54, s54, 7\ns_lshl_b32 s%d, s54, 7\ns_mul_i32 s%d, s54, 0x30000" % (c, sXOFF + c, sWOFF + c))
        a("s_lshl_b32 s76, s44, 11\ns_lshl_b32 s77, s44, 10")

    def prologue2(self, vm, ty):
        a = self.a
        a("""s_lshl_b32 s54, s41, 2
        s_lshl_b32 s55, s45, 1
        s_add_u32 s54, s54, s55
        s_lshl_b32 s54, s54, 9
        v_lshlrev_b32 v28, 5, v26
        v_lshl_add_u32 v28, v27, 3, v28
        v_add_u32 v28, s54, v28
        buffer_load_dwordx2 v[32:33], v28, s[32:35], 0 offen
        buffer_load_dwordx2 v[34:35], v28, s[32:35], 0 offen offset:512""")
        vm.issue("phi"); vm.issue("phi")
        for c in range(5): self.dma_chunk(vm, c, ty)
        self.stamp("dma0")
        a("""s_lshl_b32 s54, s46, 5
        v_add_u32 v28, s54, v26
        v_lshlrev_b32 v28, 7, v28
        v_lshrrev_b32 v29, 1, v26
        v_xor_b32 v30, v27, v29
        v_lshl_add_u32 v8, v30, 4, v28
        v_xor_b32 v9, 64, v8""")
        a("""v_lshrrev_b32 v28, 2, v26
        v_and_b32 v29, 1, v27
        v_lshl_or_b32 v29, v29, 2, v28
        v_lshl_add_u32 v30, v27, 3, v28
        v_lshlrev_b32 v30, 8, v30
        v_and_b32 v31, 3, v26
        v_lshl_add_u32 v30, v31, 3, v30
        v_add_u32 v30, 0x4000, v30
        s_lshl_b32 s54, s45, 1""")
        for c in range(4):
            ctw = (c & 1) + (4 if c >= 2 else 0)
            a("s_add_u32 s55, s54, %d\nv_xor_b32 v19, s55, v29\nv_lshl_add_u32 v%d, v19, 5, v30" % (ctw, vRW + c))
        a("""v_lshrrev_b32 v28, 3, v26
        v_and_b32 v29, 1, v27
        v_lshl_or_b32 v29, v29, 1, v28
        v_lshrrev_b32 v28, 2, v26
        v_lshl_add_u32 v30, v27, 3, v28
        v_lshlrev_b32 v30, 7, v30
        v_lshl_add_u32 v30, v31, 3, v30
        v_add_u32 v30, 0x18000, v30""")
        for j in range(2):
            a("s_add_u32 s55, s54, %d\nv_xor_b32 v19, s55, v29\nv_lshl_add_u32 v%d, v19, 5, v30" % (j, vRQ + j))
        a("""s_lshl_b32 s54, s44, 3
        v_add_u32 v28, s54, v27
        v_lshlrev_b32 v28, 10, v28
        s_lshl_b32 s55, s48, 8
        v_add_u32 v28, s55, v28
        v_and_b32 v29, 1, v0
        v_lshl_add_u32 v28, v29, 4, v28
        v_lshrrev_b32 v29, 1, v26
        v_xor_b32 v30, v29, v27
        v_lshl_add_u32 v6, v30, 5, v28
        v_add_u32 v31, 4, v27
        v_xor_b32 v30, v29, v31
        v_lshl_add_u32 v7, v30, 5, v28
        v_add_u32 v7, 0x1000, v7""")
        a("""v_lshrrev_b32 v28, 2, v26
        v_and_b32 v29, 1, v27
        v_lshl_or_b32 v29, v29, 2, v28
        v_lshl_add_u32 v30, v27, 2, v28
        v_lshlrev_b32 v30, 8, v30
        v_and_b32 v31, 3, v26
        v_lshl_add_u32 v30, v31, 3, v30
        s_lshl_b32 s54, s45, 14
        v_add_u32 v30, s54, v30
        s_lshl_b32 s54, s46, 1""")
        for ctile in range(2):
            a("s_add_u32 s55, s54, %d\nv_xor_b32 v19, s55, v29\nv_lshl_add_u32 v%d, v19, 5, v30" % (ctile, vRO + ctile))
        a("""v_lshlrev_b32 v28, 2, v27
        v_sub_u32 v28, v26, v28
        v_mov_b32 v29, 0x3f80
        v_mov_b32 v30, 0x3f800000
        v_cmp_eq_u32 vcc, 0, v28
        v_cndmask_b32 v20, 0, v29, vcc
        v_cmp_eq_u32 vcc, 1, v28
        v_cndmask_b32 v20, v20, v30, vcc
        v_cmp_eq_u32 vcc, 2, v28
        v_cndmask_b32 v21, 0, v29, vcc
        v_cmp_eq_u32 vcc, 3, v28
        v_cndmask_b32 v21, v21, v30, vcc""")
        vm.wait("phi")
        a("""v_mfma_f32_16x16x16_bf16 v[36:39], v[32:33], v[20:21], 0
        v_mfma_f32_16x16x16_bf16 v[40:43], v[34:35], v[20:21], 0
        v_cvt_pk_bf16_f32 v22, v36, v37
        v_cvt_pk_bf16_f32 v23, v38, v39
        v_cvt_pk_bf16_f32 v24, v40, v41
        v_cvt_pk_bf16_f32 v25, v42, v43""")

    def kv_reads(self, t):
        kk = t & 1; b = t & 1; L = []
        for tile in range(2):
            L.append("ds_read_b128 %s, v%d offset:%d" % (vr(vX + (2 * t + tile) * 4, 4), vRX + kk, tile * 2048))
        for c in range(4):
            for rd in range(2):
                L.append("ds_read_b64_tr_b16 %s, v%d offset:%d" % (vr(vWF + b * 16 + c * 4 + 2 * rd, 2), vRW + c, kk * 8192 + rd * 1024))
        return L
    def kv_mfmas(self, t, ty):
        b = t & 1; L = []
        for c in range(4):
            for tile in range(2):
                d = vr(vACC + (c * 2 + tile) * 4, 4); w = vr(vWF + b * 16 + c * 4, 4); x = vr(vX + (2 * t + tile) * 4, 4)
                cc = "0" if t == 0 else d
                if ty == 1 and c < 2: L.append("v_mfma_f32_16x16x32_bf16 %s, %s, %s, %s" % (d, w, x, cc))
                else: L.append("v_mfma_f32_16x16x32_bf16 %s, %s, %s, %s" % (d, x, w, cc))
        return L
    def interleave(self, m, r):
        a = self.a; i = 0; n = len(m)
        for k, x in enumerate(m):
            a(x)
            hi = ((k + 1) * len(r) + n - 1) // n
            while i < min(hi, len(r)): a(r[i]); i += 1
        while i < len(r): a(r[i]); i += 1
    def adv_slot(self, c):
        d = ((c % 5) - ((c - 1) % 5)) * SLOT
        for r in (vRX, vRX + 1, vRW, vRW + 1, vRW + 2, vRW + 3):
            if d > 0: self.a("v_add_u32 v%d, 0x%x, v%d" % (r, d, r))
            else: self.a("v_subrev_u32 v%d, 0x%x, v%d" % (r, -d, r))
    def kv_gemm(self, vm, ty):
        a = self.a
        vm.wait(("c", 0)); a("s_barrier")
        self.stamp("c0")
        for x in self.kv_reads(0): a(x)
        for t in range(16):
            a("s_waitcnt lgkmcnt(0)")
            if t == 15:
                a("s_barrier"); nxt = []
            else:
                if t & 1:
                    c = (t + 1) // 2
                    vm.wait(("c", c)); a("s_barrier")
                    if c + 4 <= 7: self.dma_chunk(vm, c + 4, ty)
                    elif c == 4: self.dma_wq(vm, 0, ty)
                    elif c == 5: self.dma_wq(vm, 1, ty)
                    elif c == 6: self.dma_wo(vm, 0, 0)
                    self.adv_slot(c)
                nxt = self.kv_reads(t + 1)
            self.interleave(self.kv_mfmas(t, ty), nxt)
        self.stamp("kv")

    def elu1(self, regs):
        a = self.a; n = len(regs)
        for i, r in enumerate(regs): a("v_mul_f32 v%d, s%d, v%d" % (vTMP + 16 + i, sL, r))
        for i, r in enumerate(regs): a("v_exp_f32_e64 v%d, v%d clamp" % (vTMP + 16 + i, vTMP + 16 + i))
        for i, r in enumerate(regs): a("v_max_f32 v%d, 0, v%d" % (r, r))
        for i, r in enumerate(regs): a("v_add_f32 v%d, s%d, v%d" % (vTMP + 16 + i, sEPS, vTMP + 16 + i))
        for i, r in enumerate(regs): a("v_add_f32 v%d, v%d, v%d" % (r, r, vTMP + 16 + i))
    def xreduce(self, op, A, B, C):
        a = self.a; n = len(A)
        for k in range(n): a("v_permlane16_swap_b32 v%d, v%d" % (A[k], B[k]))
        for k in range(n): a("%s v%d, v%d, v%d" % (op, A[k], A[k], B[k]))
        for k in range(n): a("v_mov_b32 v%d, v%d" % (B[k], A[k]))
        for k in range(n): a("v_permlane32_swap_b32 v%d, v%d" % (A[k], B[k]))
        for k in range(n): a("%s v%d, v%d, v%d" % (op, A[k], A[k], B[k]))
        for k in range(n): a("v_mov_b32 v%d, v%d" % (B[k], A[k]))
        for k in range(n): a("v_permlane16_swap_b32 v%d, v%d" % (A[k], B[k]))
    def hedgehog(self, acc, out, tn):
        a = self.a; n = 4
        cv = [vWF + 2 * k for k in range(n)]
        M = [vWF + 8 + k for k in range(n)]; N = [vWF + 12 + k for k in range(n)]
        for k in range(n):
            a("v_cvt_pk_bf16_f32 v%d, v%d, v%d" % (cv[k], acc[k], acc[k] + 1))
            a("v_cvt_pk_bf16_f32 v%d, v%d, v%d" % (cv[k] + 1, acc[k] + 2, acc[k] + 3))
        for k in range(n):
            j = k >> 1
            a("v_mfma_f32_16x16x16_bf16 %s, %s, %s, 0" % (vr(acc[k], 4), vr(vWPHI + 2 * j, 2), vr(cv[k], 2)))
        for k in range(n): a("v_max3_f32 v%d, v%d, v%d, v%d" % (M[k], acc[k], acc[k] + 1, acc[k] + 2))
        for k in range(n): a("v_max3_f32 v%d, -v%d, -v%d, -v%d" % (N[k], acc[k], acc[k] + 1, acc[k] + 2))
        for k in range(n): a("v_max_f32 v%d, v%d, v%d" % (M[k], M[k], acc[k] + 3))
        for k in range(n): a("v_max_f32_e64 v%d, v%d, -v%d" % (N[k], N[k], acc[k] + 3))
        self.xreduce("v_max_f32", M, N, None)
        for k in range(n): a("v_mul_f32 v%d, s%d, v%d" % (M[k], sL, M[k]))
        for k in range(n): a("v_mul_f32 v%d, s%d, v%d" % (N[k], sL, N[k]))
        for k in range(n):
            for r in range(4): a("v_fma_f32 v%d, -v%d, s%d, -v%d" % (tn + 4 * k + r, acc[k] + r, sL, N[k]))
        for k in range(n):
            for r in range(4): a("v_fma_f32 v%d, v%d, s%d, -v%d" % (acc[k] + r, acc[k] + r, sL, M[k]))
        for k in range(n):
            for r in range(4): a("v_exp_f32 v%d, v%d" % (tn + 4 * k + r, tn + 4 * k + r))
        for k in range(n):
            for r in range(4): a("v_exp_f32 v%d, v%d" % (acc[k] + r, acc[k] + r))
        for k in range(n): a("v_add_f32 v%d, v%d, v%d" % (N[k], tn + 4 * k, tn + 4 * k + 1))
        for k in range(n): a("v_add_f32 v%d, v%d, v%d" % (M[k], acc[k], acc[k] + 1))
        for k in range(n): a("v_add_f32 v%d, v%d, v%d" % (N[k], N[k], tn + 4 * k + 2))
        for k in range(n): a("v_add_f32 v%d, v%d, v%d" % (M[k], M[k], acc[k] + 2))
        for k in range(n): a("v_add_f32 v%d, v%d, v%d" % (N[k], N[k], tn + 4 * k + 3))
        for k in range(n): a("v_add_f32 v%d, v%d, v%d" % (M[k], M[k], acc[k] + 3))
        self.xreduce("v_add_f32", M, N, None)
        for k in range(n): a("v_rcp_f32 v%d, v%d" % (M[k], M[k]))
        for k in range(n): a("v_rcp_f32 v%d, v%d" % (N[k], N[k]))
        for k in range(n):
            for r in range(4): a("v_mul_f32 v%d, v%d, v%d" % (acc[k] + r, acc[k] + r, M[k]))
        for k in range(n):
            for r in range(4): a("v_mul_f32 v%d, v%d, v%d" % (tn + 4 * k + r, tn + 4 * k + r, N[k]))
        for k in range(n):
            a("v_cvt_pk_bf16_f32 v%d, v%d, v%d" % (out[k], acc[k], acc[k] + 1))
            a("v_cvt_pk_bf16_f32 v%d, v%d, v%d" % (out[k] + 1, acc[k] + 2, acc[k] + 3))
            a("v_cvt_pk_bf16_f32 v%d, v%d, v%d" % (out[k] + 2, tn + 4 * k, tn + 4 * k + 1))
            a("v_cvt_pk_bf16_f32 v%d, v%d, v%d" % (out[k] + 3, tn + 4 * k + 2, tn + 4 * k + 3))

    def k_phase(self, vm, ty):
        a = self.a
        K = lambda j, t: vACC + (j * 2 + t) * 4
        V = lambda j, t: vACC + ((2 + j) * 2 + t) * 4
        VP = [vTMP, vTMP + 4]
        for j in range(2):
            for t in range(2):
                a("v_cvt_pk_bf16_f32 v%d, v%d, v%d" % (VP[j] + 2 * t, V(j, t), V(j, t) + 1))
                a("v_cvt_pk_bf16_f32 v%d, v%d, v%d" % (VP[j] + 2 * t + 1, V(j, t) + 2, V(j, t) + 3))
        ONES = vA
        if ty == 0:
            self.elu1([K(j, t) + r for j in range(2) for t in range(2) for r in range(4)])
            PK = [vTMP + 8, vTMP + 12]
            for j in range(2):
                for t in range(2):
                    a("v_cvt_pk_bf16_f32 v%d, v%d, v%d" % (PK[j] + 2 * t, K(j, t), K(j, t) + 1))
                    a("v_cvt_pk_bf16_f32 v%d, v%d, v%d" % (PK[j] + 2 * t + 1, K(j, t) + 2, K(j, t) + 3))
            for r in range(4): a("v_mov_b32 v%d, 0x3f803f80" % (ONES + r))
            KVT = [vACC, vACC + 4]; ZT = [vACC + 8, vACC + 12]
            for j in range(2): a("v_mfma_f32_16x16x32_bf16 %s, %s, %s, 0" % (vr(KVT[j], 4), vr(PK[j], 4), vr(VP[j], 4)))
            for j in range(2): a("v_mfma_f32_16x16x32_bf16 %s, %s, %s, 0" % (vr(ZT[j], 4), vr(PK[j], 4), vr(ONES, 4)))
        else:
            PH = [vTMP + 8 + 4 * k for k in range(4)]
            TN = vACC + 16
            self.hedgehog([K(j, t) for j in range(2) for t in range(2)], PH, TN)
            TD = [vACC + 4 * q for q in range(8)]
            for k in range(4):
                for sg in range(2):
                    a("v_mfma_f32_16x16x16_bf16 %s, %s, %s, 0" % (vr(TD[k * 2 + sg], 4), vr(PH[k] + 2 * sg, 2), vr(vID, 2)))
            for r in range(4): a("v_mov_b32 v%d, 0x3f803f80" % (ONES + r))
            TP = [vWF + 4 * q for q in range(4)]
            for j in range(2):
                for t in range(2):
                    for sg in range(2):
                        d = TD[(j * 2 + t) * 2 + sg]; o = TP[j * 2 + sg] + 2 * t
                        a("v_cvt_pk_bf16_f32 v%d, v%d, v%d" % (o, d, d + 1))
                        a("v_cvt_pk_bf16_f32 v%d, v%d, v%d" % (o + 1, d + 2, d + 3))
            KVT = [vACC + 4 * q for q in range(4)]; ZT = [vACC + 16 + 4 * q for q in range(4)]
            for q in range(4): a("v_mfma_f32_16x16x32_bf16 %s, %s, %s, 0" % (vr(KVT[q], 4), vr(TP[q], 4), vr(VP[q >> 1], 4)))
            for q in range(4): a("v_mfma_f32_16x16x32_bf16 %s, %s, %s, 0" % (vr(ZT[q], 4), vr(TP[q], 4), vr(ONES, 4)))
        a("s_lshl_b32 s54, s44, 12\ns_add_u32 s54, s54, 0x%x\nv_add_u32 v30, s54, v18" % X1KV)
        a("s_lshl_b32 s54, s44, 8\ns_add_u32 s54, s54, 0x%x\nv_lshrrev_b32 v31, 4, v0\nv_lshlrev_b32 v31, 4, v31\nv_add_u32 v31, s54, v31" % X1Z)
        for q, r in enumerate(KVT): a("ds_write_b128 v30, %s offset:%d" % (vr(r, 4), q * 1024))
        a("s_mov_b32 exec_lo, 0x00010001\ns_mov_b32 exec_hi, 0x00010001")
        for q, r in enumerate(ZT): a("ds_write_b128 v31, %s offset:%d" % (vr(r, 4), q * 64))
        a("s_mov_b64 exec, -1")
        vm.wait(("q", 1))
        a("s_waitcnt lgkmcnt(0)\ns_barrier")
        self.stamp("x1")
        nred = 2 if ty == 0 else 4
        Lz = a.uid("Lz"); Le = a.uid("Lred")
        a("s_cmp_ge_u32 s44, %d\ns_cbranch_scc1 %s" % (nred, Lz))
        R = vTMP
        if ty == 0:
            a("s_lshl_b32 s54, s44, 14\ns_add_u32 s54, s54, 0x%x\nv_add_u32 v30, s54, v18" % X1KV)
            offs = [[rg * 4096 + h * 1024 for rg in range(4)] for h in range(2)]
            a("s_lshl_b32 s54, s41, 4\ns_add_u32 s54, s54, s40\ns_lshl_b32 s54, s54, 1\ns_add_u32 s54, s54, s44\ns_lshl_b32 s54, s54, 10\ns_add_u32 s54, s54, 0x%x" % WS_KVA)
        else:
            a("s_lshr_b32 s54, s44, 1\ns_lshl_b32 s54, s54, 14\ns_and_b32 s55, s44, 1\ns_lshl_b32 s55, s55, 11\ns_add_u32 s54, s54, s55\ns_add_u32 s54, s54, 0x%x\nv_add_u32 v30, s54, v18" % X1KV)
            offs = [[rg * 4096 + h * 1024 for rg in range(4)] for h in range(2)]
            a("s_lshl_b32 s54, s41, 4\ns_add_u32 s54, s54, s40\ns_lshl_b32 s54, s54, 2\ns_add_u32 s54, s54, s44\ns_lshl_b32 s54, s54, 10\ns_add_u32 s54, s54, 0x%x" % WS_KVB)
        for h in range(2):
            for rg in range(4): a("ds_read_b128 %s, v30 offset:%d" % (vr(R + (h * 4 + rg) * 4, 4), offs[h][rg]))
        a("v_add_u32 v31, s54, v18")
        a("s_waitcnt lgkmcnt(0)")
        for h in range(2):
            for r in range(4): a("v_add_f32 v%d, v%d, v%d" % (R + h * 16 + r, R + h * 16 + r, R + h * 16 + 4 + r))
            for r in range(4): a("v_add_f32 v%d, v%d, v%d" % (R + h * 16 + 8 + r, R + h * 16 + 8 + r, R + h * 16 + 12 + r))
        for h in range(2):
            for r in range(4): a("v_add_f32 v%d, v%d, v%d" % (R + h * 16 + r, R + h * 16 + r, R + h * 16 + 8 + r))
        a("v_cvt_pk_bf16_f32 v26, v%d, v%d\nv_cvt_pk_bf16_f32 v27, v%d, v%d" % (R, R + 1, R + 2, R + 3))
        a("v_cvt_pk_bf16_f32 v28, v%d, v%d\nv_cvt_pk_bf16_f32 v29, v%d, v%d" % (R + 16, R + 17, R + 18, R + 19))
        a("buffer_store_dwordx4 v[26:29], v31, s[24:27], 0 offen sc1")
        vm.issue("part", cond=True)
        a("s_branch %s" % Le)
        a.label(Lz)
        a("s_cmp_lg_u32 s44, 4\ns_cbranch_scc1 %s" % Le)
        nl = 16 if ty == 0 else 32
        if ty == 0:
            a("v_lshrrev_b32 v30, 3, v0\nv_lshlrev_b32 v30, 10, v30\nv_and_b32 v31, 7, v0\nv_lshl_add_u32 v30, v31, 4, v30\nv_add_u32 v30, 0x%x, v30" % X1Z)
            a("s_lshl_b32 s54, s41, 4\ns_add_u32 s54, s54, s40\ns_lshl_b32 s54, s54, 8\ns_add_u32 s54, s54, 0x%x" % WS_ZA)
            a("s_mov_b64 exec, 0xffff")
        else:
            a("v_lshrrev_b32 v30, 4, v0\nv_lshlrev_b32 v30, 10, v30\nv_and_b32 v31, 15, v0\nv_lshl_add_u32 v30, v31, 4, v30\nv_add_u32 v30, 0x%x, v30" % X1Z)
            a("s_lshl_b32 s54, s41, 4\ns_add_u32 s54, s54, s40\ns_lshl_b32 s54, s54, 9\ns_add_u32 s54, s54, 0x%x" % WS_ZB)
            a("s_mov_b32 exec_lo, -1\ns_mov_b32 exec_hi, 0")
        for rg in range(4): a("ds_read_b128 %s, v30 offset:%d" % (vr(R + rg * 4, 4), rg * 256))
        a("v_add_u32 v31, s54, v18")
        a("s_waitcnt lgkmcnt(0)")
        for r in range(4): a("v_add_f32 v%d, v%d, v%d" % (R + r, R + r, R + 4 + r))
        for r in range(4): a("v_add_f32 v%d, v%d, v%d" % (R + 8 + r, R + 8 + r, R + 12 + r))
        for r in range(4): a("v_add_f32 v%d, v%d, v%d" % (R + r, R + r, R + 8 + r))
        a("buffer_store_dwordx4 %s, v31, s[24:27], 0 offen sc1" % vr(R, 4))
        vm.issue("part", cond=True)
        a("s_mov_b64 exec, -1")
        a.label(Le)
        self.stamp("red")

    def q_reads(self, c):
        b = c & 1; L = []
        for kk in range(2):
            for j in range(2):
                for rd in range(2):
                    L.append("ds_read_b64_tr_b16 %s, v%d offset:%d" % (vr(vWF + b * 16 + (kk * 2 + j) * 4 + 2 * rd, 2), vRQ + j, (c & 3) * 8192 + kk * 4096 + rd * 512))
        return L
    def q_mfmas(self, c):
        b = c & 1; L = []
        for kk in range(2):
            for j in range(2):
                for tile in range(2):
                    d = vr(vACC + (j * 2 + tile) * 4, 4); w = vr(vWF + b * 16 + (kk * 2 + j) * 4, 4); x = vr(vX + (2 * (2 * c + kk) + tile) * 4, 4)
                    cc = "0" if (c == 0 and kk == 0) else d
                    L.append("v_mfma_f32_16x16x32_bf16 %s, %s, %s, %s" % (d, w, x, cc))
        return L
    def set_flag(self, base, idx_code):
        a = self.a; L = a.uid("Lfl")
        a("s_cmp_lg_u32 s44, 0\ns_cbranch_scc1 %s" % L)
        a(idx_code)
        a("s_add_u32 s54, s54, 0x%x\nv_mov_b32 v30, s54\nv_mov_b32 v28, s50\nv_mov_b32 v29, s51" % base)
        a("s_mov_b64 exec, 1\nbuffer_store_dwordx2 v[28:29], v30, s[24:27], 0 offen sc1\ns_mov_b64 exec, -1")
        a.label(L)
    def poll(self, base, idx_code):
        a = self.a; L = a.uid("Lpe"); Lp = a.uid("Lpl")
        a("s_cmp_lg_u32 s44, 0\ns_cbranch_scc1 %s" % L)
        a(idx_code)
        a("s_add_u32 s54, s54, 0x%x\nv_and_b32 v30, 15, v0\nv_lshlrev_b32 v30, 3, v30\nv_add_u32 v30, s54, v30\ns_mov_b32 s57, 0" % base)
        a.label(Lp)
        a("buffer_load_dwordx2 v[28:29], v30, s[24:27], 0 offen sc1\ns_add_u32 s57, s57, 1\ns_waitcnt vmcnt(0)")
        a("v_cmp_eq_u64 vcc, s[50:51], v[28:29]\ns_cmp_eq_u64 vcc, -1\ns_cbranch_scc1 %s" % L)
        a("s_cmp_lt_u32 s57, 0x40000\ns_cbranch_scc1 %s" % Lp)
        a.label(L)

    def q_gemm(self, vm, ty):
        a = self.a
        GF = [vTMP + 4 * i for i in range(8)] + [vACC + 16 + 4 * i for i in range(4)]
        isgate = "s_lshr_b32 s54, s41, 1\ns_cmp_lg_u32 s44, s54\ns_cbranch_scc1 %s"
        def gload(reg, t):
            a("buffer_load_dwordx4 %s, v30, s[36:39], s%d offen offset:%d" % (vr(reg, 4), sXOFF + (t >> 1), (t & 1) * 64)); vm.issue("gate", cond=True)
        Xr = lambda t, tile: vX + (2 * t + tile) * 4
        if ty == 1:
            Lg = a.uid("Lgl")
            a(isgate % Lg)
            a("v_lshrrev_b32 v30, 4, v0\nv_lshlrev_b32 v30, 4, v30")
            for t in range(12): gload(GF[t], t)
            a.label(Lg)
        for x in self.q_reads(0): a(x)
        for c in range(8):
            a("s_waitcnt lgkmcnt(0)")
            if c == 4:
                vm.wait("part"); a("s_barrier")
                self.set_flag(WS_F1, "s_lshl_b32 s54, s42, 3\ns_add_u32 s54, s54, s41\ns_lshl_b32 s54, s54, 4\ns_add_u32 s54, s54, s40\ns_lshl_b32 s54, s54, 3")
                if ty == 1:
                    Lg = a.uid("Lgl"); L1 = a.uid("Lg1")
                    a(isgate % Lg)
                    a("v_lshrrev_b32 v30, 4, v0\nv_lshlrev_b32 v30, 4, v30\ns_and_b32 s54, s41, 1\ns_cmp_eq_u32 s54, 1\ns_cbranch_scc1 %s" % L1)
                    for t in range(12, 16): gload(Xr(t - 12, 1), t)
                    a("s_branch %s" % Lg)
                    a.label(L1)
                    for t in range(12, 16): gload(Xr(t - 12, 0), t)
                    a.label(Lg)
                self.dma_wo(vm, 1, 1); self.dma_wo(vm, 2, 2); self.dma_wo(vm, 3, 3)
            nxt = self.q_reads(c + 1) if c < 7 else []
            if c == 3:
                for j in range(2): a("v_add_u32 v%d, 0x8000, v%d" % (vRQ + j, vRQ + j))
            self.interleave(self.q_mfmas(c), nxt)
        self.stamp("q")
        if ty == 1:
            Lg = a.uid("Lgm"); L1 = a.uid("Lg1"); L2 = a.uid("Lg2")
            a(isgate % Lg)
            vm.wait("gate")
            a("s_and_b32 s54, s41, 1\ns_cmp_eq_u32 s54, 1\ns_cbranch_scc1 %s" % L1)
            for tile, lab in ((0, None), (1, L1)):
                if lab: a.label(lab)
                GA = GF + [Xr(t, 1 - tile) for t in range(4)]
                for t in range(16):
                    a("v_mfma_f32_16x16x32_bf16 v[26:29], %s, %s, %s" % (vr(GA[t], 4), vr(Xr(t, tile), 4), "0" if t == 0 else "v[26:29]"))
                if tile == 0: a("s_branch %s" % L2)
            a.label(L2)
            a("v_mul_f32 v26, s52, v26\nv_exp_f32_e64 v26, -v26\nv_add_f32 v26, 1.0, v26\nv_rcp_f32 v26, v26")
            a("s_lshl_b32 s54, s40, 7\ns_lshl_b32 s55, s41, 4\ns_add_u32 s54, s54, s55\ns_lshl_b32 s54, s54, 2\ns_add_u32 s54, s54, 0x%x" % WS_G)
            a("v_lshlrev_b32 v30, 2, v0\nv_add_u32 v30, s54, v30\ns_mov_b64 exec, 0xffff\nbuffer_store_dword v26, v30, s[24:27], 0 offen sc1\ns_mov_b64 exec, -1")
            vm.issue("gst", cond=True)
            a.label(Lg)

    def q_phase(self, ty):
        a = self.a
        Q = lambda j, t: vACC + (j * 2 + t) * 4
        self.emit_wo_reads(0, 0)
        if ty == 1:
            self.elu1([Q(j, t) + r for j in range(2) for t in range(2) for r in range(4)])
            for k in range(4):
                q = vACC + 4 * k
                a("v_cvt_pk_bf16_f32 v%d, v%d, v%d" % (vTMP + 2 * k, q, q + 1))
                a("v_cvt_pk_bf16_f32 v%d, v%d, v%d" % (vTMP + 2 * k + 1, q + 2, q + 3))
        else:
            self.hedgehog([vACC + 4 * k for k in range(4)], [vTMP + 4 * k for k in range(4)], vACC + 16)
        self.stamp("qf")

    def gather(self, vm, ty):
        a = self.a
        self.poll(WS_F1, "s_xor_b32 s54, s42, 1\ns_lshl_b32 s54, s54, 3\ns_add_u32 s54, s54, s41\ns_lshl_b32 s54, s54, 7")
        vm.wait(("o", 3))
        a("s_waitcnt lgkmcnt(0)\ns_barrier")
        self.stamp("f1")
        G = vWF
        if ty == 0:
            a("s_lshl_b32 s54, s41, 4\ns_and_b32 s55, s44, 1\ns_lshl_b32 s55, s55, 3\ns_add_u32 s54, s54, s55\ns_lshl_b32 s54, s54, 2\ns_lshr_b32 s55, s44, 1\ns_add_u32 s54, s54, s55\ns_lshl_b32 s54, s54, 10\ns_add_u32 s54, s54, 0x%x\nv_add_u32 v30, s54, v18" % WS_KVB)
            nl = 8; step = 4096
        else:
            a("s_lshl_b32 s54, s41, 4\ns_and_b32 s55, s44, 3\ns_lshl_b32 s55, s55, 2\ns_add_u32 s54, s54, s55\ns_lshl_b32 s54, s54, 1\ns_lshr_b32 s55, s44, 2\ns_add_u32 s54, s54, s55\ns_lshl_b32 s54, s54, 10\ns_add_u32 s54, s54, 0x%x\nv_add_u32 v30, s54, v18" % WS_KVA)
            nl = 4; step = 2048
        for i in range(nl):
            a("s_mov_b32 s55, %d\nbuffer_load_dwordx4 %s, v30, s[24:27], s55 offen sc1" % (i * step, vr(G + 4 * i, 4))); vm.issue("gath")
        Lz = a.uid("Lzg"); Z = vACC
        if ty == 0:
            a("s_cmp_lt_u32 s44, 6\ns_cbranch_scc1 %s" % Lz)
            a("s_lshl_b32 s54, s41, 4\ns_and_b32 s55, s44, 1\ns_lshl_b32 s55, s55, 3\ns_add_u32 s54, s54, s55\ns_lshl_b32 s54, s54, 9\ns_add_u32 s54, s54, 0x%x\nv_add_u32 v31, s54, v18" % WS_ZB)
            for i in range(4):
                a("s_mov_b32 s55, %d\nbuffer_load_dwordx4 %s, v31, s[24:27], s55 offen sc1" % (i * 1024, vr(Z + 4 * i, 4))); vm.issue("gz", cond=True)
        else:
            a("s_cmp_lt_u32 s44, 7\ns_cbranch_scc1 %s" % Lz)
            a("s_lshl_b32 s54, s41, 4\ns_lshl_b32 s54, s54, 8\ns_add_u32 s54, s54, 0x%x\nv_add_u32 v31, s54, v18" % WS_ZA)
            for i in range(4):
                a("s_mov_b32 s55, %d\nbuffer_load_dwordx4 %s, v31, s[24:27], s55 offen sc1" % (i * 1024, vr(Z + 4 * i, 4))); vm.issue("gz", cond=True)
        a.label(Lz)
        for i in (1, 2, 3): self.emit_wo_reads(i, i)
        a("s_waitcnt lgkmcnt(0)\ns_barrier")
        self.dma_wo(vm, 4, 0); self.dma_wo(vm, 5, 1)
        S = vTMP + 16
        a("v_mov_b32 v26, 0x3f80\nv_mov_b32 v27, 0x3f800000")
        vm.wait("gath")
        self.stamp("gath")
        for i in range(nl):
            for h in range(2):
                for hw in range(2):
                    src = G + 4 * i + 2 * h + hw
                    for lo in range(2):
                        d = S + h * 4 + hw * 2 + lo
                        a("v_dot2_f32_bf16 v%d, v%d, v%d, %s" % (d, src, 26 + lo, "0" if i == 0 else "v%d" % d))
        a("s_lshl_b32 s54, s44, 11\ns_add_u32 s54, s54, 0x%x\nv_add_u32 v30, s54, v18" % X2)
        for h in range(2): a("ds_write_b128 v30, %s offset:%d" % (vr(S + 4 * h, 4), h * 1024))
        Lz = a.uid("Lzs")
        if ty == 0:
            a("s_cmp_lt_u32 s44, 6\ns_cbranch_scc1 %s" % Lz)
        else:
            a("s_cmp_lt_u32 s44, 7\ns_cbranch_scc1 %s" % Lz)
        for r in range(4): a("v_add_f32 v%d, v%d, v%d" % (Z + r, Z + r, Z + 4 + r))
        for r in range(4): a("v_add_f32 v%d, v%d, v%d" % (Z + 8 + r, Z + 8 + r, Z + 12 + r))
        for r in range(4): a("v_add_f32 v%d, v%d, v%d" % (Z + r, Z + r, Z + 8 + r))
        for r in range(4): a("v_mov_b32 v%d, v%d" % (Z + 4 + r, Z + r))
        for r in range(4): a("v_permlane32_swap_b32 v%d, v%d" % (Z + r, Z + 4 + r))
        for r in range(4): a("v_add_f32 v%d, v%d, v%d" % (Z + r, Z + r, Z + 4 + r))
        if ty == 0:
            a("s_and_b32 s54, s44, 1\ns_lshl_b32 s54, s54, 9\ns_add_u32 s54, s54, 0x%x\nv_add_u32 v30, s54, v18" % X2Z)
            a("s_mov_b32 exec_hi, 0")
        else:
            for r in range(4): a("v_mov_b32 v%d, v%d" % (Z + 4 + r, Z + r))
            for r in range(4): a("v_permlane16_swap_b32 v%d, v%d" % (Z + r, Z + 4 + r))
            for r in range(4): a("v_add_f32 v%d, v%d, v%d" % (Z + r, Z + r, Z + 4 + r))
            a("v_add_u32 v30, 0x%x, v18\ns_mov_b64 exec, 0xffff" % X2Z)
        a("ds_write_b128 v30, %s\ns_mov_b64 exec, -1" % vr(Z, 4))
        a.label(Lz)
        a("s_waitcnt lgkmcnt(0)\ns_barrier")
        self.stamp("x2")

    def o_phase(self, vm, ty):
        a = self.a
        R = vWF
        KV = [vACC, vACC + 4]; ZO = [vACC + 8, vACC + 12]
        if ty == 0:
            a("s_lshl_b32 s54, s45, 13\ns_add_u32 s54, s54, 0x%x\nv_add_u32 v30, s54, v18" % X2)
            for j in range(2):
                for sg in range(2):
                    for hf in range(2):
                        a("ds_read_b128 %s, v30 offset:%d" % (vr(R + ((j * 2 + sg) * 2 + hf) * 4, 4), (2 * j + hf) * 2048 + sg * 1024))
            a("v_lshrrev_b32 v31, 4, v0\nv_lshlrev_b32 v31, 4, v31\ns_lshl_b32 s54, s45, 8\ns_add_u32 s54, s54, 0x%x\nv_add_u32 v31, s54, v31" % X2Z)
            ZR = vTMP + 16
            zr = [vTMP + 16 + 4 * i for i in range(4)] + [vACC + 16 + 4 * i for i in range(4)]
            for j in range(2):
                for sg in range(2):
                    for hf in range(2):
                        a("ds_read_b128 %s, v31 offset:%d" % (vr(zr[(j * 2 + sg) * 2 + hf], 4), hf * 512 + j * 128 + sg * 64))
            a("s_waitcnt lgkmcnt(8)")
            for q in range(4):
                for r in range(4): a("v_add_f32 v%d, v%d, v%d" % (R + q * 8 + r, R + q * 8 + r, R + q * 8 + 4 + r))
            for j in range(2):
                for sg in range(2):
                    s = R + (j * 2 + sg) * 8
                    a("v_cvt_pk_bf16_f32 v%d, v%d, v%d\nv_cvt_pk_bf16_f32 v%d, v%d, v%d" % (KV[j] + 2 * sg, s, s + 1, KV[j] + 2 * sg + 1, s + 2, s + 3))
            a("s_waitcnt lgkmcnt(0)")
            for q in range(4):
                for r in range(4): a("v_add_f32 v%d, v%d, v%d" % (zr[2 * q] + r, zr[2 * q] + r, zr[2 * q + 1] + r))
            for j in range(2):
                for sg in range(2):
                    s = zr[(j * 2 + sg) * 2]
                    a("v_cvt_pk_bf16_f32 v%d, v%d, v%d\nv_cvt_pk_bf16_f32 v%d, v%d, v%d" % (ZO[j] + 2 * sg, s, s + 1, ZO[j] + 2 * sg + 1, s + 2, s + 3))
            NUM = [R + 4 * k for k in range(4)]; DEN = [R + 16 + 4 * k for k in range(4)]
            for k in range(4):
                j = k >> 1
                a("v_mfma_f32_16x16x32_bf16 %s, %s, %s, 0" % (vr(DEN[k], 4), vr(ZO[j], 4), vr(vTMP + 4 * k, 4)))
            for k in range(4):
                j = k >> 1
                a("v_mfma_f32_16x16x32_bf16 %s, %s, %s, 0" % (vr(NUM[k], 4), vr(KV[j], 4), vr(vTMP + 4 * k, 4)))
        else:
            a("s_lshl_b32 s54, s45, 13\ns_add_u32 s54, s54, 0x%x\nv_add_u32 v30, s54, v18" % X2)
            for j in range(2):
                for qd in range(4):
                    a("ds_read_b128 %s, v30 offset:%d" % (vr(R + (j * 4 + qd) * 4, 4), qd * 2048 + j * 1024))
            a("v_lshrrev_b32 v31, 4, v0\nv_lshlrev_b32 v31, 4, v31\ns_lshl_b32 s54, s45, 7\ns_add_u32 s54, s54, 0x%x\nv_add_u32 v31, s54, v31" % X2Z)
            zr = [vTMP + 16, vTMP + 20]
            for j in range(2): a("ds_read_b128 %s, v31 offset:%d" % (vr(zr[j], 4), j * 64))
            a("s_waitcnt lgkmcnt(2)")
            for j in range(2):
                s = R + j * 16
                for r in range(4): a("v_add_f32 v%d, v%d, v%d" % (s + r, s + r, s + 4 + r))
                for r in range(4): a("v_add_f32 v%d, v%d, v%d" % (s + 8 + r, s + 8 + r, s + 12 + r))
            for j in range(2):
                s = R + j * 16
                for r in range(4): a("v_add_f32 v%d, v%d, v%d" % (s + r, s + r, s + 8 + r))
            for j in range(2):
                s = R + j * 16
                a("v_cvt_pk_bf16_f32 v%d, v%d, v%d\nv_cvt_pk_bf16_f32 v%d, v%d, v%d" % (KV[j], s, s + 1, KV[j] + 1, s + 2, s + 3))
            a("s_waitcnt lgkmcnt(0)")
            for j in range(2):
                s = zr[j]
                a("v_cvt_pk_bf16_f32 v%d, v%d, v%d\nv_cvt_pk_bf16_f32 v%d, v%d, v%d" % (ZO[j], s, s + 1, ZO[j] + 1, s + 2, s + 3))
            NUM = [R + 4 * k for k in range(4)]; DEN = [R + 16 + 4 * k for k in range(4)]
            for k in range(4):
                j = k >> 1
                a("v_mfma_f32_16x16x16_bf16 %s, %s, %s, 0" % (vr(DEN[k], 4), vr(ZO[j], 2), vr(vTMP + 2 * k, 2)))
            for k in range(4):
                j = k >> 1
                a("v_mfma_f32_16x16x16_bf16 %s, %s, %s, 0" % (vr(NUM[k], 4), vr(KV[j], 2), vr(vTMP + 2 * k, 2)))
        OF = [vACC + 16, vACC + 20]
        a("s_lshl_b32 s54, s40, 3\ns_lshl_b32 s55, s46, 1\ns_add_u32 s54, s54, s55\ns_lshl_b32 s54, s54, 5\ns_lshl_b32 s55, s41, 1\ns_add_u32 s54, s54, s55\ns_add_u32 s54, s54, s45\ns_add_u32 s54, s54, %d\ns_lshl_b32 s54, s54, 10\ns_add_u32 s54, s54, 0x%x\nv_add_u32 v30, s54, v18" % (16 if ty == 0 else 0, WS_O))
        for k in range(4): a("v_add_f32 v%d, s%d, v%d" % (DEN[k], sEPS, DEN[k]))
        for k in range(4): a("v_rcp_f32 v%d, v%d" % (DEN[k], DEN[k]))
        for k in range(4):
            for r in range(4): a("v_mul_f32 v%d, v%d, v%d" % (NUM[k] + r, NUM[k] + r, DEN[k]))
        for k in range(4):
            j, t = k >> 1, k & 1
            a("v_cvt_pk_bf16_f32 v%d, v%d, v%d\nv_cvt_pk_bf16_f32 v%d, v%d, v%d" % (OF[t] + 2 * j, NUM[k], NUM[k] + 1, OF[t] + 2 * j + 1, NUM[k] + 2, NUM[k] + 3))
        a("s_mov_b32 s55, 0x8000")
        a("buffer_store_dwordx4 %s, v30, s[24:27], 0 offen sc1" % vr(OF[0], 4)); vm.issue("ost")
        a("buffer_store_dwordx4 %s, v30, s[24:27], s55 offen sc1" % vr(OF[1], 4)); vm.issue("ost")
        self.dma_wo(vm, 6, 2); self.dma_wo(vm, 7, 3)
        vm.wait("ost")
        a("s_barrier")
        self.set_flag(WS_F2, "s_lshl_b32 s54, s40, 4\ns_lshl_b32 s55, s42, 3\ns_add_u32 s54, s54, s55\ns_add_u32 s54, s54, s41\ns_lshl_b32 s54, s54, 3")
        self.stamp("opub")

    def p3(self, vm):
        a = self.a
        self.emit_wo_reads(4, 0); self.emit_wo_reads(5, 1)
        vm.wait(("o", 7))
        a("s_waitcnt lgkmcnt(0)\ns_barrier")
        self.emit_wo_reads(6, 2); self.emit_wo_reads(7, 3)
        self.poll(WS_F2, "s_lshr_b32 s54, s47, 2\ns_lshl_b32 s54, s54, 7")
        a("s_waitcnt lgkmcnt(0)\ns_barrier")
        self.stamp("f2")
        a("""s_lshl_b32 s54, s47, 1
        s_and_b32 s55, s44, 1
        s_add_u32 s54, s54, s55
        s_lshl_b32 s54, s54, 5
        s_lshl_b32 s55, s45, 4
        s_add_u32 s54, s54, s55
        s_bfe_u32 s55, s44, 0x10001
        s_add_u32 s54, s54, s55
        s_lshl_b32 s54, s54, 10
        s_add_u32 s54, s54, 0x%x
        v_add_u32 v30, s54, v18""" % WS_O)
        for i in range(8):
            a("s_add_u32 s55, s49, %d\ns_and_b32 s55, s55, 7\ns_lshl_b32 s55, s55, 11" % i)
            self.dma(vm, ("of", i), 30, S_WS, "s55", sM1K, OT + i * 8192, extra=" sc1")
        a("s_lshl_b32 s54, s47, 5\ns_lshl_b32 s55, s45, 4\ns_add_u32 s54, s54, s55\ns_lshl_b32 s54, s54, 2\ns_add_u32 s54, s54, 0x%x" % WS_G)
        a("v_and_b32 v31, 15, v0\nv_lshlrev_b32 v31, 2, v31\nv_add_u32 v31, s54, v31\nbuffer_load_dword v19, v31, s[24:27], 0 offen sc1"); vm.issue("g")
        Le = a.uid("Lep")
        a("s_cmp_lg_u32 s2, 0\ns_cbranch_scc1 %s\ns_cmp_lg_u32 s44, 0\ns_cbranch_scc1 %s" % (Le, Le))
        a("v_mov_b32 v28, s50\nv_mov_b32 v29, s51\nv_mov_b32 v27, 0\ns_mov_b64 exec, 1\nbuffer_store_dwordx2 v[28:29], v27, s[24:27], 0 offen\ns_mov_b64 exec, -1")
        vm.issue("ep", cond=True)
        a.label(Le)
        a("s_lshl_b32 s54, s45, 12\ns_lshl_b32 s55, s45, 10\ns_add_u32 s54, s54, s55\nv_add_u32 v26, s54, v18\nv_xor_b32 v27, 0x400, v26")
        OWN = [vACC, vACC + 4]; OTH = [vACC + 8, vACC + 12]
        F = vWF
        def reads(i):
            L = []
            for pl in range(2):
                for ot in range(2):
                    L.append("ds_read_b128 %s, v%d offset:%d" % (vr(F + (i & 1) * 16 + (pl * 2 + ot) * 4, 4), 26 + ot, i * 8192 + pl * 2048))
            return L
        def mf(i):
            L = []
            for pl in range(2):
                for ot in range(2):
                    for ct in range(2):
                        d = vr((OWN if ot == 0 else OTH)[ct], 4)
                        L.append("v_mfma_f32_16x16x32_bf16 %s, %s, %s, %s" % (d, vr(vX + i * 16 + (pl * 2 + ct) * 4, 4), vr(F + (i & 1) * 16 + (pl * 2 + ot) * 4, 4), "0" if (i == 0 and pl == 0) else d))
            return L
        vm.wait(("of", 3)); a("s_barrier")
        self.stamp("of0")
        for x in reads(0): a(x)
        for i in range(8):
            a("s_waitcnt lgkmcnt(0)")
            if i == 3:
                vm.wait("g"); a("s_barrier")
            self.interleave(mf(i), reads(i + 1) if i < 7 else [])
        self.stamp("p3")
        a("s_lshl_b32 s54, s44, 11\ns_add_u32 s54, s54, 0x%x\nv_add_u32 v30, s54, v18\ns_xor_b32 s55, s44, 4\ns_lshl_b32 s55, s55, 11\ns_add_u32 s55, s55, 0x%x\nv_add_u32 v31, s55, v18" % (RBUF, RBUF))
        for ct in range(2): a("ds_write_b128 v30, %s offset:%d" % (vr(OTH[ct], 4), ct * 1024))
        a("v_sub_f32 v28, 1.0, v19\ns_cmp_eq_u32 s45, 0\ns_cselect_b64 vcc, -1, 0\nv_cndmask_b32 v29, v28, v19, vcc\nv_cndmask_b32 v28, v19, v28, vcc")
        a("s_waitcnt lgkmcnt(0)\ns_barrier")
        P = vWF
        for ct in range(2): a("ds_read_b128 %s, v31 offset:%d" % (vr(P + 4 * ct, 4), ct * 1024))
        for ct in range(2):
            for r in range(4): a("v_mul_f32 v%d, v29, v%d" % (OWN[ct] + r, OWN[ct] + r))
        a("""s_lshl_b32 s54, s47, 5
        s_lshl_b32 s55, s45, 4
        s_add_u32 s54, s54, s55
        v_and_b32 v30, 15, v0
        v_add_u32 v30, s54, v30
        v_lshlrev_b32 v30, 10, v30
        v_lshrrev_b32 v31, 4, v0
        v_and_b32 v26, 1, v31
        v_lshrrev_b32 v31, 1, v31
        v_lshlrev_b32 v26, 5, v26
        v_lshl_add_u32 v26, v31, 4, v26
        s_lshl_b32 s54, s48, 8
        s_lshl_b32 s55, s46, 6
        s_add_u32 s54, s54, s55
        v_add3_u32 v30, v30, v26, s54""")
        a("s_waitcnt lgkmcnt(0)")
        for ct in range(2):
            for r in range(4): a("v_fma_f32 v%d, v28, v%d, v%d" % (OWN[ct] + r, P + 4 * ct + r, OWN[ct] + r))
        O = vTMP
        for ct in range(2):
            a("v_cvt_pk_bf16_f32 v%d, v%d, v%d\nv_cvt_pk_bf16_f32 v%d, v%d, v%d" % (O + 2 * ct, OWN[ct], OWN[ct] + 1, O + 2 * ct + 1, OWN[ct] + 2, OWN[ct] + 3))
        a("v_permlane16_swap_b32 v%d, v%d\nv_permlane16_swap_b32 v%d, v%d" % (O, O + 2, O + 1, O + 3))
        a("buffer_store_dwordx4 %s, v30, s[28:31], 0 offen" % vr(O, 4))
        self.stamp("end")

    def finish(self):
        a = self.a
        if self.stamps:
            L = a.uid("Lst")
            a("s_memrealtime s[54:55]\ns_waitcnt lgkmcnt(0)")
            a("s_lshl_b32 s56, s2, 3\ns_add_u32 s56, s56, s44\ns_lshl_b32 s56, s56, 7\ns_add_u32 s56, s56, 0x%x" % WS_STAMP)
            a("v_mov_b32 v30, s56\ns_mov_b64 exec, 1")
            for i in range(self.nst_max):
                a("v_mov_b32 v26, s%d\nbuffer_store_dword v26, v30, s[24:27], 0 offen offset:%d" % (sSTAMP + i, 4 * i))
            a("v_mov_b32 v26, s100\nbuffer_store_dword v26, v30, s[24:27], 0 offen offset:120")
            a("v_mov_b32 v26, s54\nbuffer_store_dword v26, v30, s[24:27], 0 offen offset:124")
            a("s_waitcnt vmcnt(0)")
        a.label("L_end")
        a("s_endpgm")

    def build(self):
        a = self.a
        self.prologue()
        n0 = self.nst; names0 = list(self.stnames)
        a("s_cmp_eq_u32 s42, 1\ns_cbranch_scc1 L_type1")
        vms = []
        for ty in range(2):
            if ty == 1: a.label("L_type1")
            self.nst = n0; self.stnames = list(names0)
            vm = VM(a)
            self.prologue2(vm, ty)
            a("s_waitcnt lgkmcnt(0)\ns_add_u32 s50, s50, 1\ns_xor_b32 s51, s51, 0x9e3779b9")
            self.kv_gemm(vm, ty)
            self.k_phase(vm, ty)
            self.q_gemm(vm, ty)
            self.q_phase(ty)
            self.gather(vm, ty)
            self.o_phase(vm, ty)
            vms.append(vm)
            if ty == 0: a("s_branch L_p3")
        a.label("L_p3")
        t0 = [t for (t, c) in vms[0].q if not c][-10:]; t1 = [t for (t, c) in vms[1].q if not c][-10:]
        assert t0 == t1, (t0, t1)
        self.p3(vms[1])
        self.nst_max = self.nst
        self.finish()
        lines, sites = hazard.fix(a.lines)
        self.sites = sites
        body = "\n".join(lines) + "\n"
        hdr = open("gated_mix__linear_attn_block__linear_kernel_hedgehog__prompt.s.ref").read().split("; Override")[0].rstrip().split("\n")
        hdr.append("; @launch grid=(256,1,1) block=(512,1,1) lds=163840")
        return module(hdr, [(KN, body, 256, 102, 256)])

if __name__ == "__main__":
    import argparse
    ap = argparse.ArgumentParser(); ap.add_argument("-o", default="fused.s"); ap.add_argument("--stamps", action="store_true")
    args = ap.parse_args()
    g = Gen(stamps=args.stamps)
    txt = g.build()
    open(args.o, "w").write(txt)
    print("written", args.o, len(txt), "bytes;", "stamps:", g.stnames)
    for s in g.sites[:60]: print("  nop", s)
```

```python
import sys
sys.path.insert(0, "work")
from asmgen import Asm, module
import hazard

KN = "gated_mix__linear_attn_block__linear_kernel_hedgehog__prompt_kernel"

def vr(n, k=1): return "v%d" % n if k == 1 else "v[%d:%d]" % (n, n + k - 1)
def sr(n, k=1): return "s%d" % n if k == 1 else "s[%d:%d]" % (n, n + k - 1)

WS_E = 0x0; WS_F1 = 0x1000; WS_F2 = 0x2000; WS_G = 0x4000
WS_KVB = 0x10000; WS_ZB = 0x90000; WS_KVA = 0xA0000; WS_ZA = 0xE0000
WS_O = 0x100000; WS_SIZE = 0x500000; WS_STAMP = 0x600000
SLOT = 32768
X1KV = 1 * SLOT; X1Z = 2 * SLOT
X2 = 4 * SLOT; X2Z = X2 + 16384
OT = 0; RBUF = 4 * SLOT
S_X, S_WA, S_WB, S_OA, S_OB, S_WS, S_OUT, S_PHI, S_GATE = 4, 8, 12, 16, 20, 24, 28, 32, 36
sRB, sHG, sTY, sROT, sW, sP, sRG, sRS, sCT, sROT3 = 40, 41, 42, 43, 44, 45, 46, 47, 48, 49
sTAG = 50; sL = 52; sEPS = 53; sT0, sT1, sT2, sSPIN = 54, 55, 56, 57; sEX = 58
sXOFF = 60; sWOFF = 68; sM2K = 76; sM1K = 77; sT3 = 78; sT4 = 79
sSTAMP = 80
vLANE = 0
vXa, vXb, vWa, vWb, vQ, vOa, vOb = 1, 2, 3, 4, 5, 6, 7
vRX = 8; vRW = 10; vRQ = 14; vRO = 16; vL16 = 18; vT = 19
vID = 20; vWPHI = 22
vA = 26
vTMP = 32
vWF = 64; vACC = 96; vX = 128

class VM:
    def __init__(self, a): self.a = a; self.q = []
    def issue(self, tag, cond=False): self.q.append((tag, cond))
    def wait(self, tag):
        idx = max(i for i, (t, c) in enumerate(self.q) if t == tag)
        n = sum(1 for (t, c) in self.q[idx + 1:] if not c)
        assert n < 64
        self.a("s_waitcnt vmcnt(%d)" % n)
    def copy(self, a=None):
        v = VM(a or self.a); v.q = list(self.q); return v

class Gen:
    def __init__(self, stamps=False, stop=None, dbg=False, dbg_wg=0):
        self.dbg = dbg; self.dbg_wg = dbg_wg
        self.a = Asm(); self.stamps = stamps; self.nst = 0; self.stop = stop; self.stnames = []
    def stamp(self, name):
        if not self.stamps: return
        i = self.nst; assert i < 22
        self.nst += 1; self.stnames.append(name)
        self.a("s_memtime s[%d:%d]" % (sT3, sT4))
        self.a("s_waitcnt lgkmcnt(0)")
        self.a("s_mov_b32 s%d, s%d" % (sSTAMP + i, sT3))

    def dma(self, vm, tag, voff, srd, soff, ldsbase_s, ldsimm, extra=""):
        a = self.a
        a("s_add_u32 m0, s%d, %d" % (ldsbase_s, ldsimm))
        if isinstance(soff, int):
            a("s_mov_b32 s%d, %d" % (sT0, soff)); so = "s%d" % sT0
        else:
            a("s_nop 0"); so = soff
        a("buffer_load_dwordx4 %s, %s, %s offen%s lds" % (vr(voff), sr(srd, 4), so, extra))
        vm.issue(tag)
    def dma_chunk(self, vm, c, ty):
        base = (c % 5) * SLOT
        wsrd = S_WA if ty == 0 else S_WB
        self.dma(vm, ("c", c), vXa, S_X, "s%d" % (sXOFF + c), sM2K, base)
        self.dma(vm, ("c", c), vXb, S_X, "s%d" % (sXOFF + c), sM2K, base + 1024)
        self.dma(vm, ("c", c), vWa, wsrd, "s%d" % (sWOFF + c), sM2K, base + 16384)
        self.dma(vm, ("c", c), vWb, wsrd, "s%d" % (sWOFF + c), sM2K, base + 16384 + 1024)
    def dma_wq(self, vm, half, ty):
        slot = 3 + half
        qsrd = S_WB if ty == 0 else S_WA
        for i in range(4):
            self.dma(vm, ("q", half), vQ, qsrd, "s%d" % (sWOFF + half * 4 + i), sM1K, slot * SLOT + i * 8192)
    def dma_wo(self, vm, i, slot):
        a = self.a
        a("s_add_u32 s%d, s%d, %d\ns_and_b32 s%d, s%d, 7\ns_lshl_b32 s%d, s%d, 16" % (sT1, sROT3, i, sT1, sT1, sT1, sT1))
        for (kh, srd) in ((0, S_OA), (1, S_OB)):
            self.dma(vm, ("o", i), vOa, srd, "s%d" % sT1, sM2K, slot * SLOT + kh * 16384)
            self.dma(vm, ("o", i), vOb, srd, "s%d" % sT1, sM2K, slot * SLOT + kh * 16384 + 1024)
    def read_wo(self, i, slot):
        out = []
        for pl in range(2):
            for ctile in range(2):
                r = vX + i * 16 + (pl * 2 + ctile) * 4
                for rd in range(2):
                    off = pl * 8192 + rd * 4096
                    out.append((r + 2 * rd, vRO + ctile, slot * SLOT + off))
        return out
    def emit_wo_reads(self, i, slot):
        a = self.a
        base = slot * SLOT
        hi = base if base + 12288 + 4096 > 65535 else 0
        if hi:
            a("v_add_u32 v%d, %d, v%d\nv_add_u32 v%d, %d, v%d" % (vA, hi, vRO, vA + 1, hi, vRO + 1))
        for (r, adr, off) in self.read_wo(i, slot):
            if hi: a("ds_read_b64_tr_b16 %s, v%d offset:%d" % (vr(r, 2), vA + (adr - vRO), off - hi))
            else: a("ds_read_b64_tr_b16 %s, v%d offset:%d" % (vr(r, 2), adr, off))

    def prologue(self):
        a = self.a
        a("s_cmp_ge_u32 s2, 256\ns_cbranch_scc1 L_end")
        if self.stamps: a("s_memrealtime s[100:101]")
        self.stamp("start")
        a("""s_load_dwordx4 s[60:63], s[0:1], 0
        s_load_dwordx2 s[64:65], s[0:1], 16
        s_load_dwordx4 s[68:71], s[0:1], 32
        s_load_dwordx4 s[72:75], s[0:1], 48
        s_load_dwordx2 s[76:77], s[0:1], 64
        s_load_dwordx2 s[78:79], s[0:1], 80""")
        a("""s_and_b32 s54, s2, 7
        s_lshr_b32 s55, s2, 3
        s_and_b32 s56, s55, 7
        s_lshr_b32 s57, s55, 3
        s_and_b32 s40, s54, 1
        s_lshl_b32 s40, s40, 3
        s_add_u32 s40, s40, s56
        s_lshr_b32 s41, s54, 1
        s_lshl_b32 s41, s41, 2
        s_add_u32 s41, s41, s57
        s_and_b32 s42, s41, 1
        s_lshr_b32 s41, s41, 1
        s_lshl_b32 s43, s57, 1
        s_add_u32 s43, s43, s56
        s_and_b32 s43, s43, 7
        s_lshl_b32 s47, s54, 3
        s_add_u32 s47, s47, s56
        s_mov_b32 s48, s57
        s_mov_b32 s49, s56""")
        a("""v_lshrrev_b32 v19, 6, v0
        v_and_b32 v0, 63, v0
        v_readfirstlane_b32 s44, v19
        v_lshlrev_b32 v18, 4, v0
        v_and_b32 v26, 15, v0
        v_lshrrev_b32 v27, 4, v0
        s_lshr_b32 s45, s44, 2
        s_and_b32 s46, s44, 3
        s_mov_b32 s52, 0x3fb8aa3b
        s_mov_b32 s53, 0x358637bd""")
        a("""v_lshrrev_b32 v28, 3, v0
        v_and_b32 v29, 7, v0
        s_lshl_b32 s54, s40, 7
        s_lshl_b32 s55, s44, 4
        s_add_u32 s54, s54, s55
        v_add_u32 v28, s54, v28
        v_lshlrev_b32 v28, 10, v28
        v_xor_b32 v30, v29, v27
        v_lshl_add_u32 v1, v30, 4, v28
        v_add_u32 v31, 4, v27
        v_xor_b32 v30, v29, v31
        v_lshl_add_u32 v2, v30, 4, v28
        v_add_u32 v2, 0x2000, v2""")
        a("""s_and_b32 s54, s44, 1
        s_lshl_b32 s55, s54, 2
        v_or_b32 v28, s55, v27
        v_lshrrev_b32 v29, 1, v26
        v_xor_b32 v28, v29, v28
        v_lshrrev_b32 v29, 2, v28
        v_lshlrev_b32 v29, 10, v29
        v_and_b32 v28, 3, v28
        v_lshl_add_u32 v29, v28, 5, v29
        v_and_b32 v28, 1, v0
        v_lshl_add_u32 v29, v28, 4, v29
        s_lshl_b32 s55, s44, 3
        v_add_u32 v28, s55, v27
        v_mul_u32_u24 v28, 0xc00, v28
        s_lshl_b32 s56, s41, 7
        s_add_u32 s56, s56, 1024
        v_add3_u32 v3, v28, v29, s56
        v_add_u32 v4, 0x3000, v3""")
        a("""s_lshl_b32 s55, s54, 1
        v_and_b32 v28, 1, v27
        v_or_b32 v28, s55, v28
        v_bfe_u32 v29, v0, 1, 2
        v_xor_b32 v28, v29, v28
        v_lshlrev_b32 v28, 5, v28
        v_and_b32 v29, 1, v0
        v_lshl_add_u32 v28, v29, 4, v28
        v_lshrrev_b32 v29, 3, v0
        s_lshl_b32 s55, s44, 3
        v_add_u32 v29, s55, v29
        v_mul_u32_u24 v29, 0xc00, v29
        s_lshl_b32 s56, s41, 7
        v_add3_u32 v5, v28, v29, s56""")
        a("s_waitcnt lgkmcnt(0)")
        def srd(d, b, size):
            a("s_mov_b32 s%d, s%d\ns_and_b32 s%d, s%d, 0xffff\ns_mov_b32 s%d, 0x%x\ns_mov_b32 s%d, 0x20000" % (d, b, d + 1, b + 1, d + 2, size, d + 3))
        srd(S_X, 60, 0x200000); srd(S_WA, 62, 0x180000); srd(S_WB, 68, 0x180000)
        srd(S_WS, 78, WS_STAMP + 0x40000 if self.stamps else WS_SIZE)
        a("s_load_dwordx2 s[50:51], s[78:79], 0")
        srd(S_PHI, 70, 0x4000); srd(S_OA, 64, 0x80000); srd(S_OB, 72, 0x80000); srd(S_GATE, 74, 0x400); srd(S_OUT, 76, 0x200000)
        for c in range(8):
            a("s_add_u32 s54, s43, %d\ns_and_b32 s54, s54, 7\ns_lshl_b32 s%d, s54, 7\ns_mul_i32 s%d, s54, 0x30000" % (c, sXOFF + c, sWOFF + c))
        a("s_lshl_b32 s76, s44, 11\ns_lshl_b32 s77, s44, 10")

    def prologue2(self, vm, ty):
        a = self.a
        a("""s_lshl_b32 s54, s41, 2
        s_lshl_b32 s55, s45, 1
        s_add_u32 s54, s54, s55
        s_lshl_b32 s54, s54, 9
        v_lshlrev_b32 v28, 5, v26
        v_lshl_add_u32 v28, v27, 3, v28
        v_add_u32 v28, s54, v28
        buffer_load_dwordx2 v[32:33], v28, s[32:35], 0 offen
        buffer_load_dwordx2 v[34:35], v28, s[32:35], 0 offen offset:512""")
        vm.issue("phi"); vm.issue("phi")
        for c in range(5): self.dma_chunk(vm, c, ty)
        self.stamp("dma0")
        a("""s_lshl_b32 s54, s46, 5
        v_add_u32 v28, s54, v26
        v_lshlrev_b32 v28, 7, v28
        v_lshrrev_b32 v29, 1, v26
        v_xor_b32 v30, v27, v29
        v_lshl_add_u32 v8, v30, 4, v28
        v_xor_b32 v9, 64, v8""")
        a("""v_lshrrev_b32 v28, 2, v26
        v_and_b32 v29, 1, v27
        v_lshl_or_b32 v29, v29, 2, v28
        v_lshl_add_u32 v30, v27, 3, v28
        v_lshlrev_b32 v30, 8, v30
        v_and_b32 v31, 3, v26
        v_lshl_add_u32 v30, v31, 3, v30
        v_add_u32 v30, 0x4000, v30
        s_lshl_b32 s54, s45, 1""")
        for c in range(4):
            ctw = (c & 1) + (4 if c >= 2 else 0)
            a("s_add_u32 s55, s54, %d\nv_xor_b32 v19, s55, v29\nv_lshl_add_u32 v%d, v19, 5, v30" % (ctw, vRW + c))
        a("""v_lshrrev_b32 v28, 3, v26
        v_and_b32 v29, 1, v27
        v_lshl_or_b32 v29, v29, 1, v28
        v_lshrrev_b32 v28, 2, v26
        v_lshl_add_u32 v30, v27, 3, v28
        v_lshlrev_b32 v30, 7, v30
        v_lshl_add_u32 v30, v31, 3, v30
        v_add_u32 v30, 0x18000, v30""")
        for j in range(2):
            a("s_add_u32 s55, s54, %d\nv_xor_b32 v19, s55, v29\nv_lshl_add_u32 v%d, v19, 5, v30" % (j, vRQ + j))
        a("""s_lshl_b32 s54, s44, 3
        v_add_u32 v28, s54, v27
        v_lshlrev_b32 v28, 10, v28
        s_lshl_b32 s55, s48, 8
        v_add_u32 v28, s55, v28
        v_and_b32 v29, 1, v0
        v_lshl_add_u32 v28, v29, 4, v28
        v_lshrrev_b32 v29, 1, v26
        v_xor_b32 v30, v29, v27
        v_lshl_add_u32 v6, v30, 5, v28
        v_add_u32 v31, 4, v27
        v_xor_b32 v30, v29, v31
        v_lshl_add_u32 v7, v30, 5, v28
        v_add_u32 v7, 0x1000, v7""")
        a("""v_lshrrev_b32 v28, 2, v26
        v_and_b32 v29, 1, v27
        v_lshl_or_b32 v29, v29, 2, v28
        v_lshl_add_u32 v30, v27, 2, v28
        v_lshlrev_b32 v30, 8, v30
        v_and_b32 v31, 3, v26
        v_lshl_add_u32 v30, v31, 3, v30
        s_lshl_b32 s54, s45, 14
        v_add_u32 v30, s54, v30
        s_lshl_b32 s54, s46, 1""")
        for ctile in range(2):
            a("s_add_u32 s55, s54, %d\nv_xor_b32 v19, s55, v29\nv_lshl_add_u32 v%d, v19, 5, v30" % (ctile, vRO + ctile))
        a("""v_lshlrev_b32 v28, 2, v27
        v_sub_u32 v28, v26, v28
        v_mov_b32 v29, 0x3f80
        v_mov_b32 v30, 0x3f800000
        v_cmp_eq_u32 vcc, 0, v28
        v_cndmask_b32 v20, 0, v29, vcc
        v_cmp_eq_u32 vcc, 1, v28
        v_cndmask_b32 v20, v20, v30, vcc
        v_cmp_eq_u32 vcc, 2, v28
        v_cndmask_b32 v21, 0, v29, vcc
        v_cmp_eq_u32 vcc, 3, v28
        v_cndmask_b32 v21, v21, v30, vcc""")
        vm.wait("phi")
        a("""v_mfma_f32_16x16x16_bf16 v[36:39], v[32:33], v[20:21], 0
        v_mfma_f32_16x16x16_bf16 v[40:43], v[34:35], v[20:21], 0
        v_cvt_pk_bf16_f32 v22, v36, v37
        v_cvt_pk_bf16_f32 v23, v38, v39
        v_cvt_pk_bf16_f32 v24, v40, v41
        v_cvt_pk_bf16_f32 v25, v42, v43""")

    def kv_reads(self, t):
        kk = t & 1; b = t & 1; L = []
        for tile in range(2):
            L.append("ds_read_b128 %s, v%d offset:%d" % (vr(vX + (2 * t + tile) * 4, 4), vRX + kk, tile * 2048))
        for c in range(4):
            for rd in range(2):
                L.append("ds_read_b64_tr_b16 %s, v%d offset:%d" % (vr(vWF + b * 16 + c * 4 + 2 * rd, 2), vRW + c, kk * 8192 + rd * 1024))
        return L
    def kv_mfmas(self, t, ty):
        b = t & 1; L = []
        for c in range(4):
            for tile in range(2):
                d = vr(vACC + (c * 2 + tile) * 4, 4); w = vr(vWF + b * 16 + c * 4, 4); x = vr(vX + (2 * t + tile) * 4, 4)
                cc = "0" if t == 0 else d
                if ty == 1 and c < 2: L.append("v_mfma_f32_16x16x32_bf16 %s, %s, %s, %s" % (d, w, x, cc))
                else: L.append("v_mfma_f32_16x16x32_bf16 %s, %s, %s, %s" % (d, x, w, cc))
        return L
    def interleave(self, m, r):
        a = self.a; i = 0; n = len(m)
        for k, x in enumerate(m):
            a(x)
            hi = ((k + 1) * len(r) + n - 1) // n
            while i < min(hi, len(r)): a(r[i]); i += 1
        while i < len(r): a(r[i]); i += 1
    def adv_slot(self, c):
        d = ((c % 5) - ((c - 1) % 5)) * SLOT
        for r in (vRX, vRX + 1, vRW, vRW + 1, vRW + 2, vRW + 3):
            if d > 0: self.a("v_add_u32 v%d, 0x%x, v%d" % (r, d, r))
            else: self.a("v_subrev_u32 v%d, 0x%x, v%d" % (r, -d, r))
    def kv_gemm(self, vm, ty):
        a = self.a
        vm.wait(("c", 0)); a("s_barrier")
        self.stamp("c0")
        for x in self.kv_reads(0): a(x)
        for t in range(16):
            a("s_waitcnt lgkmcnt(0)")
            if t == 15:
                a("s_barrier"); nxt = []
            else:
                if t & 1:
                    c = (t + 1) // 2
                    vm.wait(("c", c)); a("s_barrier")
                    if c + 4 <= 7: self.dma_chunk(vm, c + 4, ty)
                    elif c == 4: self.dma_wq(vm, 0, ty)
                    elif c == 5: self.dma_wq(vm, 1, ty)
                    elif c == 6: self.dma_wo(vm, 0, 0)
                    self.adv_slot(c)
                nxt = self.kv_reads(t + 1)
            self.interleave(self.kv_mfmas(t, ty), nxt)
        self.stamp("kv")

    def elu1(self, regs):
        a = self.a; n = len(regs)
        for i, r in enumerate(regs): a("v_mul_f32 v%d, s%d, v%d" % (vTMP + 16 + i, sL, r))
        for i, r in enumerate(regs): a("v_exp_f32_e64 v%d, v%d clamp" % (vTMP + 16 + i, vTMP + 16 + i))
        for i, r in enumerate(regs): a("v_max_f32 v%d, 0, v%d" % (r, r))
        for i, r in enumerate(regs): a("v_add_f32 v%d, s%d, v%d" % (vTMP + 16 + i, sEPS, vTMP + 16 + i))
        for i, r in enumerate(regs): a("v_add_f32 v%d, v%d, v%d" % (r, r, vTMP + 16 + i))
    def xreduce(self, op, A, B, C):
        a = self.a; n = len(A)
        for k in range(n): a("v_permlane16_swap_b32 v%d, v%d" % (A[k], B[k]))
        for k in range(n): a("%s v%d, v%d, v%d" % (op, A[k], A[k], B[k]))
        for k in range(n): a("v_mov_b32 v%d, v%d" % (B[k], A[k]))
        for k in range(n): a("v_permlane32_swap_b32 v%d, v%d" % (A[k], B[k]))
        for k in range(n): a("%s v%d, v%d, v%d" % (op, A[k], A[k], B[k]))
        for k in range(n): a("v_mov_b32 v%d, v%d" % (B[k], A[k]))
        for k in range(n): a("v_permlane16_swap_b32 v%d, v%d" % (A[k], B[k]))
    def hedgehog(self, acc, out, tn):
        a = self.a; n = 4
        cv = [vWF + 2 * k for k in range(n)]
        M = [vWF + 8 + k for k in range(n)]; N = [vWF + 12 + k for k in range(n)]
        for k in range(n):
            a("v_cvt_pk_bf16_f32 v%d, v%d, v%d" % (cv[k], acc[k], acc[k] + 1))
            a("v_cvt_pk_bf16_f32 v%d, v%d, v%d" % (cv[k] + 1, acc[k] + 2, acc[k] + 3))
        for k in range(n):
            j = k >> 1
            a("v_mfma_f32_16x16x16_bf16 %s, %s, %s, 0" % (vr(acc[k], 4), vr(vWPHI + 2 * j, 2), vr(cv[k], 2)))
        for k in range(n): a("v_max3_f32 v%d, v%d, v%d, v%d" % (M[k], acc[k], acc[k] + 1, acc[k] + 2))
        for k in range(n): a("v_max3_f32 v%d, -v%d, -v%d, -v%d" % (N[k], acc[k], acc[k] + 1, acc[k] + 2))
        for k in range(n): a("v_max_f32 v%d, v%d, v%d" % (M[k], M[k], acc[k] + 3))
        for k in range(n): a("v_max_f32_e64 v%d, v%d, -v%d" % (N[k], N[k], acc[k] + 3))
        self.xreduce("v_max_f32", M, N, None)
        for k in range(n): a("v_mul_f32 v%d, s%d, v%d" % (M[k], sL, M[k]))
        for k in range(n): a("v_mul_f32 v%d, s%d, v%d" % (N[k], sL, N[k]))
        for k in range(n):
            for r in range(4): a("v_fma_f32 v%d, -v%d, s%d, -v%d" % (tn + 4 * k + r, acc[k] + r, sL, N[k]))
        for k in range(n):
            for r in range(4): a("v_fma_f32 v%d, v%d, s%d, -v%d" % (acc[k] + r, acc[k] + r, sL, M[k]))
        for k in range(n):
            for r in range(4): a("v_exp_f32 v%d, v%d" % (tn + 4 * k + r, tn + 4 * k + r))
        for k in range(n):
            for r in range(4): a("v_exp_f32 v%d, v%d" % (acc[k] + r, acc[k] + r))
        for k in range(n): a("v_add_f32 v%d, v%d, v%d" % (N[k], tn + 4 * k, tn + 4 * k + 1))
        for k in range(n): a("v_add_f32 v%d, v%d, v%d" % (M[k], acc[k], acc[k] + 1))
        for k in range(n): a("v_add_f32 v%d, v%d, v%d" % (N[k], N[k], tn + 4 * k + 2))
        for k in range(n): a("v_add_f32 v%d, v%d, v%d" % (M[k], M[k], acc[k] + 2))
        for k in range(n): a("v_add_f32 v%d, v%d, v%d" % (N[k], N[k], tn + 4 * k + 3))
        for k in range(n): a("v_add_f32 v%d, v%d, v%d" % (M[k], M[k], acc[k] + 3))
        self.xreduce("v_add_f32", M, N, None)
        for k in range(n): a("v_rcp_f32 v%d, v%d" % (M[k], M[k]))
        for k in range(n): a("v_rcp_f32 v%d, v%d" % (N[k], N[k]))
        for k in range(n):
            for r in range(4): a("v_mul_f32 v%d, v%d, v%d" % (acc[k] + r, acc[k] + r, M[k]))
        for k in range(n):
            for r in range(4): a("v_mul_f32 v%d, v%d, v%d" % (tn + 4 * k + r, tn + 4 * k + r, N[k]))
        for k in range(n):
            a("v_cvt_pk_bf16_f32 v%d, v%d, v%d" % (out[k], acc[k], acc[k] + 1))
            a("v_cvt_pk_bf16_f32 v%d, v%d, v%d" % (out[k] + 1, acc[k] + 2, acc[k] + 3))
            a("v_cvt_pk_bf16_f32 v%d, v%d, v%d" % (out[k] + 2, tn + 4 * k, tn + 4 * k + 1))
            a("v_cvt_pk_bf16_f32 v%d, v%d, v%d" % (out[k] + 3, tn + 4 * k + 2, tn + 4 * k + 3))

    def k_phase(self, vm, ty):
        a = self.a
        K = lambda j, t: vACC + (j * 2 + t) * 4
        V = lambda j, t: vACC + ((2 + j) * 2 + t) * 4
        VP = [vTMP, vTMP + 4]
        for j in range(2):
            for t in range(2):
                a("v_cvt_pk_bf16_f32 v%d, v%d, v%d" % (VP[j] + 2 * t, V(j, t), V(j, t) + 1))
                a("v_cvt_pk_bf16_f32 v%d, v%d, v%d" % (VP[j] + 2 * t + 1, V(j, t) + 2, V(j, t) + 3))
        ONES = vA
        if ty == 0:
            self.elu1([K(j, t) + r for j in range(2) for t in range(2) for r in range(4)])
            PK = [vTMP + 8, vTMP + 12]
            for j in range(2):
                for t in range(2):
                    a("v_cvt_pk_bf16_f32 v%d, v%d, v%d" % (PK[j] + 2 * t, K(j, t), K(j, t) + 1))
                    a("v_cvt_pk_bf16_f32 v%d, v%d, v%d" % (PK[j] + 2 * t + 1, K(j, t) + 2, K(j, t) + 3))
            for r in range(4): a("v_mov_b32 v%d, 0x3f803f80" % (ONES + r))
            KVT = [vACC, vACC + 4]; ZT = [vACC + 8, vACC + 12]
            for j in range(2): a("v_mfma_f32_16x16x32_bf16 %s, %s, %s, 0" % (vr(KVT[j], 4), vr(PK[j], 4), vr(VP[j], 4)))
            for j in range(2): a("v_mfma_f32_16x16x32_bf16 %s, %s, %s, 0" % (vr(ZT[j], 4), vr(PK[j], 4), vr(ONES, 4)))
        else:
            PH = [vTMP + 8 + 4 * k for k in range(4)]
            TN = vACC + 16
            self.hedgehog([K(j, t) for j in range(2) for t in range(2)], PH, TN)
            TD = [vACC + 4 * q for q in range(8)]
            for k in range(4):
                for sg in range(2):
                    a("v_mfma_f32_16x16x16_bf16 %s, %s, %s, 0" % (vr(TD[k * 2 + sg], 4), vr(PH[k] + 2 * sg, 2), vr(vID, 2)))
            for r in range(4): a("v_mov_b32 v%d, 0x3f803f80" % (ONES + r))
            TP = [vWF + 4 * q for q in range(4)]
            for j in range(2):
                for t in range(2):
                    for sg in range(2):
                        d = TD[(j * 2 + t) * 2 + sg]; o = TP[j * 2 + sg] + 2 * t
                        a("v_cvt_pk_bf16_f32 v%d, v%d, v%d" % (o, d, d + 1))
                        a("v_cvt_pk_bf16_f32 v%d, v%d, v%d" % (o + 1, d + 2, d + 3))
            KVT = [vACC + 4 * q for q in range(4)]; ZT = [vACC + 16 + 4 * q for q in range(4)]
            for q in range(4): a("v_mfma_f32_16x16x32_bf16 %s, %s, %s, 0" % (vr(KVT[q], 4), vr(TP[q], 4), vr(VP[q >> 1], 4)))
            for q in range(4): a("v_mfma_f32_16x16x32_bf16 %s, %s, %s, 0" % (vr(ZT[q], 4), vr(TP[q], 4), vr(ONES, 4)))
        a("s_lshl_b32 s54, s44, 12\ns_add_u32 s54, s54, 0x%x\nv_add_u32 v30, s54, v18" % X1KV)
        a("s_lshl_b32 s54, s44, 8\ns_add_u32 s54, s54, 0x%x\nv_lshrrev_b32 v31, 4, v0\nv_lshlrev_b32 v31, 4, v31\nv_add_u32 v31, s54, v31" % X1Z)
        for q, r in enumerate(KVT): a("ds_write_b128 v30, %s offset:%d" % (vr(r, 4), q * 1024))
        a("s_mov_b32 exec_lo, 0x00010001\ns_mov_b32 exec_hi, 0x00010001")
        for q, r in enumerate(ZT): a("ds_write_b128 v31, %s offset:%d" % (vr(r, 4), q * 64))
        a("s_mov_b64 exec, -1")
        vm.wait(("q", 1))
        a("s_waitcnt lgkmcnt(0)\ns_barrier")
        self.stamp("x1")
        nred = 2 if ty == 0 else 4
        Lz = a.uid("Lz"); Le = a.uid("Lred")
        a("s_cmp_ge_u32 s44, %d\ns_cbranch_scc1 %s" % (nred, Lz))
        R = vTMP
        if ty == 0:
            a("s_lshl_b32 s54, s44, 14\ns_add_u32 s54, s54, 0x%x\nv_add_u32 v30, s54, v18" % X1KV)
            offs = [[rg * 4096 + h * 1024 for rg in range(4)] for h in range(2)]
            a("s_lshl_b32 s54, s41, 4\ns_add_u32 s54, s54, s40\ns_lshl_b32 s54, s54, 1\ns_add_u32 s54, s54, s44\ns_lshl_b32 s54, s54, 10\ns_add_u32 s54, s54, 0x%x" % WS_KVA)
        else:
            a("s_lshr_b32 s54, s44, 1\ns_lshl_b32 s54, s54, 14\ns_and_b32 s55, s44, 1\ns_lshl_b32 s55, s55, 11\ns_add_u32 s54, s54, s55\ns_add_u32 s54, s54, 0x%x\nv_add_u32 v30, s54, v18" % X1KV)
            offs = [[rg * 4096 + h * 1024 for rg in range(4)] for h in range(2)]
            a("s_lshl_b32 s54, s41, 4\ns_add_u32 s54, s54, s40\ns_lshl_b32 s54, s54, 2\ns_add_u32 s54, s54, s44\ns_lshl_b32 s54, s54, 10\ns_add_u32 s54, s54, 0x%x" % WS_KVB)
        for h in range(2):
            for rg in range(4): a("ds_read_b128 %s, v30 offset:%d" % (vr(R + (h * 4 + rg) * 4, 4), offs[h][rg]))
        a("v_add_u32 v31, s54, v18")
        a("s_waitcnt lgkmcnt(0)")
        for h in range(2):
            for r in range(4): a("v_add_f32 v%d, v%d, v%d" % (R + h * 16 + r, R + h * 16 + r, R + h * 16 + 4 + r))
            for r in range(4): a("v_add_f32 v%d, v%d, v%d" % (R + h * 16 + 8 + r, R + h * 16 + 8 + r, R + h * 16 + 12 + r))
        for h in range(2):
            for r in range(4): a("v_add_f32 v%d, v%d, v%d" % (R + h * 16 + r, R + h * 16 + r, R + h * 16 + 8 + r))
        a("v_cvt_pk_bf16_f32 v26, v%d, v%d\nv_cvt_pk_bf16_f32 v27, v%d, v%d" % (R, R + 1, R + 2, R + 3))
        a("v_cvt_pk_bf16_f32 v28, v%d, v%d\nv_cvt_pk_bf16_f32 v29, v%d, v%d" % (R + 16, R + 17, R + 18, R + 19))
        a("buffer_store_dwordx4 v[26:29], v31, s[24:27], 0 offen sc1")
        vm.issue("part", cond=True)
        a("s_branch %s" % Le)
        a.label(Lz)
        a("s_cmp_lg_u32 s44, 4\ns_cbranch_scc1 %s" % Le)
        nl = 16 if ty == 0 else 32
        if ty == 0:
            a("v_lshrrev_b32 v30, 3, v0\nv_lshlrev_b32 v30, 10, v30\nv_and_b32 v31, 7, v0\nv_lshl_add_u32 v30, v31, 4, v30\nv_add_u32 v30, 0x%x, v30" % X1Z)
            a("s_lshl_b32 s54, s41, 4\ns_add_u32 s54, s54, s40\ns_lshl_b32 s54, s54, 8\ns_add_u32 s54, s54, 0x%x" % WS_ZA)
            a("s_mov_b64 exec, 0xffff")
        else:
            a("v_lshrrev_b32 v30, 4, v0\nv_lshlrev_b32 v30, 10, v30\nv_and_b32 v31, 15, v0\nv_lshl_add_u32 v30, v31, 4, v30\nv_add_u32 v30, 0x%x, v30" % X1Z)
            a("s_lshl_b32 s54, s41, 4\ns_add_u32 s54, s54, s40\ns_lshl_b32 s54, s54, 9\ns_add_u32 s54, s54, 0x%x" % WS_ZB)
            a("s_mov_b32 exec_lo, -1\ns_mov_b32 exec_hi, 0")
        for rg in range(4): a("ds_read_b128 %s, v30 offset:%d" % (vr(R + rg * 4, 4), rg * 256))
        a("v_add_u32 v31, s54, v18")
        a("s_waitcnt lgkmcnt(0)")
        for r in range(4): a("v_add_f32 v%d, v%d, v%d" % (R + r, R + r, R + 4 + r))
        for r in range(4): a("v_add_f32 v%d, v%d, v%d" % (R + 8 + r, R + 8 + r, R + 12 + r))
        for r in range(4): a("v_add_f32 v%d, v%d, v%d" % (R + r, R + r, R + 8 + r))
        a("buffer_store_dwordx4 %s, v31, s[24:27], 0 offen sc1" % vr(R, 4))
        vm.issue("part", cond=True)
        a("s_mov_b64 exec, -1")
        a.label(Le)
        self.stamp("red")

    def q_reads(self, c):
        b = c & 1; L = []
        for kk in range(2):
            for j in range(2):
                for rd in range(2):
                    L.append("ds_read_b64_tr_b16 %s, v%d offset:%d" % (vr(vWF + b * 16 + (kk * 2 + j) * 4 + 2 * rd, 2), vRQ + j, (c & 3) * 8192 + kk * 4096 + rd * 512))
        return L
    def q_mfmas(self, c):
        b = c & 1; L = []
        for kk in range(2):
            for j in range(2):
                for tile in range(2):
                    d = vr(vACC + (j * 2 + tile) * 4, 4); w = vr(vWF + b * 16 + (kk * 2 + j) * 4, 4); x = vr(vX + (2 * (2 * c + kk) + tile) * 4, 4)
                    cc = "0" if (c == 0 and kk == 0) else d
                    L.append("v_mfma_f32_16x16x32_bf16 %s, %s, %s, %s" % (d, w, x, cc))
        return L
    def set_flag(self, base, idx_code):
        a = self.a; L = a.uid("Lfl")
        a("s_cmp_lg_u32 s44, 0\ns_cbranch_scc1 %s" % L)
        a(idx_code)
        a("s_add_u32 s54, s54, 0x%x\nv_mov_b32 v30, s54\nv_mov_b32 v28, s50\nv_mov_b32 v29, s51" % base)
        a("s_mov_b64 exec, 1\nbuffer_store_dwordx2 v[28:29], v30, s[24:27], 0 offen sc1\ns_mov_b64 exec, -1")
        a.label(L)
    def poll(self, base, idx_code):
        a = self.a; L = a.uid("Lpe"); Lp = a.uid("Lpl")
        a("s_cmp_lg_u32 s44, 0\ns_cbranch_scc1 %s" % L)
        a(idx_code)
        a("s_add_u32 s54, s54, 0x%x\nv_and_b32 v30, 15, v0\nv_lshlrev_b32 v30, 3, v30\nv_add_u32 v30, s54, v30\ns_mov_b32 s57, 0" % base)
        a.label(Lp)
        a("buffer_load_dwordx2 v[28:29], v30, s[24:27], 0 offen sc1\ns_add_u32 s57, s57, 1\ns_waitcnt vmcnt(0)")
        a("v_cmp_eq_u64 vcc, s[50:51], v[28:29]\ns_cmp_eq_u64 vcc, -1\ns_cbranch_scc1 %s" % L)
        a("s_cmp_lt_u32 s57, 0x40000\ns_cbranch_scc1 %s" % Lp)
        a.label(L)

    def q_gemm(self, vm, ty):
        a = self.a
        GF = [vTMP + 4 * i for i in range(8)] + [vACC + 16 + 4 * i for i in range(4)]
        isgate = "s_lshr_b32 s54, s41, 1\ns_cmp_lg_u32 s44, s54\ns_cbranch_scc1 %s"
        def gload(reg, t):
            a("buffer_load_dwordx4 %s, v30, s[36:39], s%d offen offset:%d" % (vr(reg, 4), sXOFF + (t >> 1), (t & 1) * 64)); vm.issue("gate", cond=True)
        Xr = lambda t, tile: vX + (2 * t + tile) * 4
        if ty == 1:
            Lg = a.uid("Lgl")
            a(isgate % Lg)
            a("v_lshrrev_b32 v30, 4, v0\nv_lshlrev_b32 v30, 4, v30")
            for t in range(12): gload(GF[t], t)
            a.label(Lg)
        for x in self.q_reads(0): a(x)
        for c in range(8):
            a("s_waitcnt lgkmcnt(0)")
            if c == 4:
                vm.wait("part"); a("s_barrier")
                self.set_flag(WS_F1, "s_lshl_b32 s54, s42, 3\ns_add_u32 s54, s54, s41\ns_lshl_b32 s54, s54, 4\ns_add_u32 s54, s54, s40\ns_lshl_b32 s54, s54, 3")
                if ty == 1:
                    Lg = a.uid("Lgl"); L1 = a.uid("Lg1")
                    a(isgate % Lg)
                    a("v_lshrrev_b32 v30, 4, v0\nv_lshlrev_b32 v30, 4, v30\ns_and_b32 s54, s41, 1\ns_cmp_eq_u32 s54, 1\ns_cbranch_scc1 %s" % L1)
                    for t in range(12, 16): gload(Xr(t - 12, 1), t)
                    a("s_branch %s" % Lg)
                    a.label(L1)
                    for t in range(12, 16): gload(Xr(t - 12, 0), t)
                    a.label(Lg)
                self.dma_wo(vm, 1, 1); self.dma_wo(vm, 2, 2); self.dma_wo(vm, 3, 3)
            nxt = self.q_reads(c + 1) if c < 7 else []
            if c == 3:
                for j in range(2): a("v_add_u32 v%d, 0x8000, v%d" % (vRQ + j, vRQ + j))
            self.interleave(self.q_mfmas(c), nxt)
        self.stamp("q")
        if ty == 1:
            Lg = a.uid("Lgm"); L1 = a.uid("Lg1"); L2 = a.uid("Lg2")
            a(isgate % Lg)
            vm.wait("gate")
            a("s_and_b32 s54, s41, 1\ns_cmp_eq_u32 s54, 1\ns_cbranch_scc1 %s" % L1)
            for tile, lab in ((0, None), (1, L1)):
                if lab: a.label(lab)
                GA = GF + [Xr(t, 1 - tile) for t in range(4)]
                for t in range(16):
                    a("v_mfma_f32_16x16x32_bf16 v[26:29], %s, %s, %s" % (vr(GA[t], 4), vr(Xr(t, tile), 4), "0" if t == 0 else "v[26:29]"))
                if tile == 0: a("s_branch %s" % L2)
            a.label(L2)
            a("v_mul_f32 v26, s52, v26\nv_exp_f32_e64 v26, -v26\nv_add_f32 v26, 1.0, v26\nv_rcp_f32 v26, v26")
            a("s_lshl_b32 s54, s40, 7\ns_lshl_b32 s55, s41, 4\ns_add_u32 s54, s54, s55\ns_lshl_b32 s54, s54, 2\ns_add_u32 s54, s54, 0x%x" % WS_G)
            a("v_lshlrev_b32 v30, 2, v0\nv_add_u32 v30, s54, v30\ns_mov_b64 exec, 0xffff\nbuffer_store_dword v26, v30, s[24:27], 0 offen sc1\ns_mov_b64 exec, -1")
            vm.issue("gst", cond=True)
            a.label(Lg)

    def q_phase(self, ty):
        a = self.a
        Q = lambda j, t: vACC + (j * 2 + t) * 4
        self.emit_wo_reads(0, 0)
        if ty == 1:
            self.elu1([Q(j, t) + r for j in range(2) for t in range(2) for r in range(4)])
            for k in range(4):
                q = vACC + 4 * k
                a("v_cvt_pk_bf16_f32 v%d, v%d, v%d" % (vTMP + 2 * k, q, q + 1))
                a("v_cvt_pk_bf16_f32 v%d, v%d, v%d" % (vTMP + 2 * k + 1, q + 2, q + 3))
        else:
            self.hedgehog([vACC + 4 * k for k in range(4)], [vTMP + 4 * k for k in range(4)], vACC + 16)
        self.stamp("qf")

    def gather(self, vm, ty):
        a = self.a
        self.poll(WS_F1, "s_xor_b32 s54, s42, 1\ns_lshl_b32 s54, s54, 3\ns_add_u32 s54, s54, s41\ns_lshl_b32 s54, s54, 7")
        vm.wait(("o", 3))
        a("s_waitcnt lgkmcnt(0)\ns_barrier")
        self.stamp("f1")
        G = vWF
        if ty == 0:
            a("s_lshl_b32 s54, s41, 4\ns_and_b32 s55, s44, 1\ns_lshl_b32 s55, s55, 3\ns_add_u32 s54, s54, s55\ns_lshl_b32 s54, s54, 2\ns_lshr_b32 s55, s44, 1\ns_add_u32 s54, s54, s55\ns_lshl_b32 s54, s54, 10\ns_add_u32 s54, s54, 0x%x\nv_add_u32 v30, s54, v18" % WS_KVB)
            nl = 8; step = 4096
        else:
            a("s_lshl_b32 s54, s41, 4\ns_and_b32 s55, s44, 3\ns_lshl_b32 s55, s55, 2\ns_add_u32 s54, s54, s55\ns_lshl_b32 s54, s54, 1\ns_lshr_b32 s55, s44, 2\ns_add_u32 s54, s54, s55\ns_lshl_b32 s54, s54, 10\ns_add_u32 s54, s54, 0x%x\nv_add_u32 v30, s54, v18" % WS_KVA)
            nl = 4; step = 2048
        for i in range(nl):
            a("s_mov_b32 s55, %d\nbuffer_load_dwordx4 %s, v30, s[24:27], s55 offen sc1" % (i * step, vr(G + 4 * i, 4))); vm.issue("gath")
        Lz = a.uid("Lzg"); Z = vACC
        if ty == 0:
            a("s_cmp_lt_u32 s44, 6\ns_cbranch_scc1 %s" % Lz)
            a("s_lshl_b32 s54, s41, 4\ns_and_b32 s55, s44, 1\ns_lshl_b32 s55, s55, 3\ns_add_u32 s54, s54, s55\ns_lshl_b32 s54, s54, 9\ns_add_u32 s54, s54, 0x%x\nv_add_u32 v31, s54, v18" % WS_ZB)
            for i in range(4):
                a("s_mov_b32 s55, %d\nbuffer_load_dwordx4 %s, v31, s[24:27], s55 offen sc1" % (i * 1024, vr(Z + 4 * i, 4))); vm.issue("gz", cond=True)
        else:
            a("s_cmp_lt_u32 s44, 7\ns_cbranch_scc1 %s" % Lz)
            a("s_lshl_b32 s54, s41, 4\ns_lshl_b32 s54, s54, 8\ns_add_u32 s54, s54, 0x%x\nv_add_u32 v31, s54, v18" % WS_ZA)
            for i in range(4):
                a("s_mov_b32 s55, %d\nbuffer_load_dwordx4 %s, v31, s[24:27], s55 offen sc1" % (i * 1024, vr(Z + 4 * i, 4))); vm.issue("gz", cond=True)
        a.label(Lz)
        for i in (1, 2, 3): self.emit_wo_reads(i, i)
        a("s_waitcnt lgkmcnt(0)\ns_barrier")
        self.dma_wo(vm, 4, 0); self.dma_wo(vm, 5, 1)
        S = vTMP + 16
        a("v_mov_b32 v26, 0x3f80\nv_mov_b32 v27, 0x3f800000")
        vm.wait("gath")
        self.stamp("gath")
        for i in range(nl):
            for h in range(2):
                for hw in range(2):
                    src = G + 4 * i + 2 * h + hw
                    for lo in range(2):
                        d = S + h * 4 + hw * 2 + lo
                        a("v_dot2_f32_bf16 v%d, v%d, v%d, %s" % (d, src, 26 + lo, "0" if i == 0 else "v%d" % d))
        a("s_lshl_b32 s54, s44, 11\ns_add_u32 s54, s54, 0x%x\nv_add_u32 v30, s54, v18" % X2)
        for h in range(2): a("ds_write_b128 v30, %s offset:%d" % (vr(S + 4 * h, 4), h * 1024))
        Lz = a.uid("Lzs")
        if ty == 0:
            a("s_cmp_lt_u32 s44, 6\ns_cbranch_scc1 %s" % Lz)
        else:
            a("s_cmp_lt_u32 s44, 7\ns_cbranch_scc1 %s" % Lz)
        for r in range(4): a("v_add_f32 v%d, v%d, v%d" % (Z + r, Z + r, Z + 4 + r))
        for r in range(4): a("v_add_f32 v%d, v%d, v%d" % (Z + 8 + r, Z + 8 + r, Z + 12 + r))
        for r in range(4): a("v_add_f32 v%d, v%d, v%d" % (Z + r, Z + r, Z + 8 + r))
        for r in range(4): a("v_mov_b32 v%d, v%d" % (Z + 4 + r, Z + r))
        for r in range(4): a("v_permlane32_swap_b32 v%d, v%d" % (Z + r, Z + 4 + r))
        for r in range(4): a("v_add_f32 v%d, v%d, v%d" % (Z + r, Z + r, Z + 4 + r))
        if ty == 0:
            a("s_and_b32 s54, s44, 1\ns_lshl_b32 s54, s54, 9\ns_add_u32 s54, s54, 0x%x\nv_add_u32 v30, s54, v18" % X2Z)
            a("s_mov_b32 exec_hi, 0")
        else:
            for r in range(4): a("v_mov_b32 v%d, v%d" % (Z + 4 + r, Z + r))
            for r in range(4): a("v_permlane16_swap_b32 v%d, v%d" % (Z + r, Z + 4 + r))
            for r in range(4): a("v_add_f32 v%d, v%d, v%d" % (Z + r, Z + r, Z + 4 + r))
            a("v_add_u32 v30, 0x%x, v18\ns_mov_b64 exec, 0xffff" % X2Z)
        a("ds_write_b128 v30, %s\ns_mov_b64 exec, -1" % vr(Z, 4))
        a.label(Lz)
        a("s_waitcnt lgkmcnt(0)\ns_barrier")
        self.stamp("x2")

    def o_phase(self, vm, ty):
        a = self.a
        R = vWF
        KV = [vACC, vACC + 4]; ZO = [vACC + 8, vACC + 12]
        if ty == 0:
            a("s_lshl_b32 s54, s45, 13\ns_add_u32 s54, s54, 0x%x\nv_add_u32 v30, s54, v18" % X2)
            for j in range(2):
                for sg in range(2):
                    for hf in range(2):
                        a("ds_read_b128 %s, v30 offset:%d" % (vr(R + ((j * 2 + sg) * 2 + hf) * 4, 4), (2 * j + hf) * 2048 + sg * 1024))
            a("v_lshrrev_b32 v31, 4, v0\nv_lshlrev_b32 v31, 4, v31\ns_lshl_b32 s54, s45, 8\ns_add_u32 s54, s54, 0x%x\nv_add_u32 v31, s54, v31" % X2Z)
            ZR = vTMP + 16
            zr = [vTMP + 16 + 4 * i for i in range(4)] + [vACC + 16 + 4 * i for i in range(4)]
            for j in range(2):
                for sg in range(2):
                    for hf in range(2):
                        a("ds_read_b128 %s, v31 offset:%d" % (vr(zr[(j * 2 + sg) * 2 + hf], 4), hf * 512 + j * 128 + sg * 64))
            a("s_waitcnt lgkmcnt(8)")
            for q in range(4):
                for r in range(4): a("v_add_f32 v%d, v%d, v%d" % (R + q * 8 + r, R + q * 8 + r, R + q * 8 + 4 + r))
            for j in range(2):
                for sg in range(2):
                    s = R + (j * 2 + sg) * 8
                    a("v_cvt_pk_bf16_f32 v%d, v%d, v%d\nv_cvt_pk_bf16_f32 v%d, v%d, v%d" % (KV[j] + 2 * sg, s, s + 1, KV[j] + 2 * sg + 1, s + 2, s + 3))
            a("s_waitcnt lgkmcnt(0)")
            for q in range(4):
                for r in range(4): a("v_add_f32 v%d, v%d, v%d" % (zr[2 * q] + r, zr[2 * q] + r, zr[2 * q + 1] + r))
            for j in range(2):
                for sg in range(2):
                    s = zr[(j * 2 + sg) * 2]
                    a("v_cvt_pk_bf16_f32 v%d, v%d, v%d\nv_cvt_pk_bf16_f32 v%d, v%d, v%d" % (ZO[j] + 2 * sg, s, s + 1, ZO[j] + 2 * sg + 1, s + 2, s + 3))
            NUM = [R + 4 * k for k in range(4)]; DEN = [R + 16 + 4 * k for k in range(4)]
            for k in range(4):
                j = k >> 1
                a("v_mfma_f32_16x16x32_bf16 %s, %s, %s, 0" % (vr(DEN[k], 4), vr(ZO[j], 4), vr(vTMP + 4 * k, 4)))
            for k in range(4):
                j = k >> 1
                a("v_mfma_f32_16x16x32_bf16 %s, %s, %s, 0" % (vr(NUM[k], 4), vr(KV[j], 4), vr(vTMP + 4 * k, 4)))
        else:
            a("s_lshl_b32 s54, s45, 13\ns_add_u32 s54, s54, 0x%x\nv_add_u32 v30, s54, v18" % X2)
            for j in range(2):
                for qd in range(4):
                    a("ds_read_b128 %s, v30 offset:%d" % (vr(R + (j * 4 + qd) * 4, 4), qd * 2048 + j * 1024))
            a("v_lshrrev_b32 v31, 4, v0\nv_lshlrev_b32 v31, 4, v31\ns_lshl_b32 s54, s45, 7\ns_add_u32 s54, s54, 0x%x\nv_add_u32 v31, s54, v31" % X2Z)
            zr = [vTMP + 16, vTMP + 20]
            for j in range(2): a("ds_read_b128 %s, v31 offset:%d" % (vr(zr[j], 4), j * 64))
            a("s_waitcnt lgkmcnt(2)")
            for j in range(2):
                s = R + j * 16
                for r in range(4): a("v_add_f32 v%d, v%d, v%d" % (s + r, s + r, s + 4 + r))
                for r in range(4): a("v_add_f32 v%d, v%d, v%d" % (s + 8 + r, s + 8 + r, s + 12 + r))
            for j in range(2):
                s = R + j * 16
                for r in range(4): a("v_add_f32 v%d, v%d, v%d" % (s + r, s + r, s + 8 + r))
            for j in range(2):
                s = R + j * 16
                a("v_cvt_pk_bf16_f32 v%d, v%d, v%d\nv_cvt_pk_bf16_f32 v%d, v%d, v%d" % (KV[j], s, s + 1, KV[j] + 1, s + 2, s + 3))
            a("s_waitcnt lgkmcnt(0)")
            for j in range(2):
                s = zr[j]
                a("v_cvt_pk_bf16_f32 v%d, v%d, v%d\nv_cvt_pk_bf16_f32 v%d, v%d, v%d" % (ZO[j], s, s + 1, ZO[j] + 1, s + 2, s + 3))
            NUM = [R + 4 * k for k in range(4)]; DEN = [R + 16 + 4 * k for k in range(4)]
            for k in range(4):
                j = k >> 1
                a("v_mfma_f32_16x16x16_bf16 %s, %s, %s, 0" % (vr(DEN[k], 4), vr(ZO[j], 2), vr(vTMP + 2 * k, 2)))
            for k in range(4):
                j = k >> 1
                a("v_mfma_f32_16x16x16_bf16 %s, %s, %s, 0" % (vr(NUM[k], 4), vr(KV[j], 2), vr(vTMP + 2 * k, 2)))
        OF = [vACC + 16, vACC + 20]
        a("s_lshl_b32 s54, s40, 3\ns_lshl_b32 s55, s46, 1\ns_add_u32 s54, s54, s55\ns_lshl_b32 s54, s54, 5\ns_lshl_b32 s55, s41, 1\ns_add_u32 s54, s54, s55\ns_add_u32 s54, s54, s45\ns_add_u32 s54, s54, %d\ns_lshl_b32 s54, s54, 10\ns_add_u32 s54, s54, 0x%x\nv_add_u32 v30, s54, v18" % (16 if ty == 0 else 0, WS_O))
        for k in range(4): a("v_add_f32 v%d, s%d, v%d" % (DEN[k], sEPS, DEN[k]))
        for k in range(4): a("v_rcp_f32 v%d, v%d" % (DEN[k], DEN[k]))
        for k in range(4):
            for r in range(4): a("v_mul_f32 v%d, v%d, v%d" % (NUM[k] + r, NUM[k] + r, DEN[k]))
        for k in range(4):
            j, t = k >> 1, k & 1
            a("v_cvt_pk_bf16_f32 v%d, v%d, v%d\nv_cvt_pk_bf16_f32 v%d, v%d, v%d" % (OF[t] + 2 * j, NUM[k], NUM[k] + 1, OF[t] + 2 * j + 1, NUM[k] + 2, NUM[k] + 3))
        a("s_mov_b32 s55, 0x8000")
        a("buffer_store_dwordx4 %s, v30, s[24:27], 0 offen sc1" % vr(OF[0], 4)); vm.issue("ost")
        a("buffer_store_dwordx4 %s, v30, s[24:27], s55 offen sc1" % vr(OF[1], 4)); vm.issue("ost")
        self.dma_wo(vm, 6, 2); self.dma_wo(vm, 7, 3)
        vm.wait("ost")
        a("s_barrier")
        self.set_flag(WS_F2, "s_lshl_b32 s54, s40, 4\ns_lshl_b32 s55, s42, 3\ns_add_u32 s54, s54, s55\ns_add_u32 s54, s54, s41\ns_lshl_b32 s54, s54, 3")
        self.stamp("opub")

    def p3(self, vm):
        a = self.a
        self.emit_wo_reads(4, 0); self.emit_wo_reads(5, 1)
        vm.wait(("o", 7))
        a("s_waitcnt lgkmcnt(0)\ns_barrier")
        self.emit_wo_reads(6, 2); self.emit_wo_reads(7, 3)
        self.poll(WS_F2, "s_lshr_b32 s54, s47, 2\ns_lshl_b32 s54, s54, 7")
        a("s_waitcnt lgkmcnt(0)\ns_barrier")
        self.stamp("f2")
        a("""s_lshl_b32 s54, s47, 1
        s_and_b32 s55, s44, 1
        s_add_u32 s54, s54, s55
        s_lshl_b32 s54, s54, 5
        s_lshl_b32 s55, s45, 4
        s_add_u32 s54, s54, s55
        s_bfe_u32 s55, s44, 0x10001
        s_add_u32 s54, s54, s55
        s_lshl_b32 s54, s54, 10
        s_add_u32 s54, s54, 0x%x
        v_add_u32 v30, s54, v18""" % WS_O)
        for i in range(8):
            a("s_add_u32 s55, s49, %d\ns_and_b32 s55, s55, 7\ns_lshl_b32 s55, s55, 11" % i)
            self.dma(vm, ("of", i), 30, S_WS, "s55", sM1K, OT + i * 8192, extra=" sc1")
        a("s_lshl_b32 s54, s47, 5\ns_lshl_b32 s55, s45, 4\ns_add_u32 s54, s54, s55\ns_lshl_b32 s54, s54, 2\ns_add_u32 s54, s54, 0x%x" % WS_G)
        a("v_and_b32 v31, 15, v0\nv_lshlrev_b32 v31, 2, v31\nv_add_u32 v31, s54, v31\nbuffer_load_dword v19, v31, s[24:27], 0 offen sc1"); vm.issue("g")
        Le = a.uid("Lep")
        a("s_cmp_lg_u32 s2, 0\ns_cbranch_scc1 %s\ns_cmp_lg_u32 s44, 0\ns_cbranch_scc1 %s" % (Le, Le))
        a("v_mov_b32 v28, s50\nv_mov_b32 v29, s51\nv_mov_b32 v27, 0\ns_mov_b64 exec, 1\nbuffer_store_dwordx2 v[28:29], v27, s[24:27], 0 offen\ns_mov_b64 exec, -1")
        vm.issue("ep", cond=True)
        a.label(Le)
        a("s_lshl_b32 s54, s45, 12\ns_lshl_b32 s55, s45, 10\ns_add_u32 s54, s54, s55\nv_add_u32 v26, s54, v18\nv_xor_b32 v27, 0x400, v26")
        OWN = [vACC, vACC + 4]; OTH = [vACC + 8, vACC + 12]
        F = vWF
        def reads(i):
            L = []
            for pl in range(2):
                for ot in range(2):
                    L.append("ds_read_b128 %s, v%d offset:%d" % (vr(F + (i & 1) * 16 + (pl * 2 + ot) * 4, 4), 26 + ot, i * 8192 + pl * 2048))
            return L
        def mf(i):
            L = []
            for pl in range(2):
                for ot in range(2):
                    for ct in range(2):
                        d = vr((OWN if ot == 0 else OTH)[ct], 4)
                        L.append("v_mfma_f32_16x16x32_bf16 %s, %s, %s, %s" % (d, vr(vX + i * 16 + (pl * 2 + ct) * 4, 4), vr(F + (i & 1) * 16 + (pl * 2 + ot) * 4, 4), "0" if (i == 0 and pl == 0) else d))
            return L
        vm.wait(("of", 3)); a("s_barrier")
        self.stamp("of0")
        for x in reads(0): a(x)
        for i in range(8):
            a("s_waitcnt lgkmcnt(0)")
            if i == 3:
                vm.wait("g"); a("s_barrier")
            self.interleave(mf(i), reads(i + 1) if i < 7 else [])
        self.stamp("p3")
        a("s_lshl_b32 s54, s44, 11\ns_add_u32 s54, s54, 0x%x\nv_add_u32 v30, s54, v18\ns_xor_b32 s55, s44, 4\ns_lshl_b32 s55, s55, 11\ns_add_u32 s55, s55, 0x%x\nv_add_u32 v31, s55, v18" % (RBUF, RBUF))
        for ct in range(2): a("ds_write_b128 v30, %s offset:%d" % (vr(OTH[ct], 4), ct * 1024))
        a("v_sub_f32 v28, 1.0, v19\ns_cmp_eq_u32 s45, 0\ns_cselect_b64 vcc, -1, 0\nv_cndmask_b32 v29, v28, v19, vcc\nv_cndmask_b32 v28, v19, v28, vcc")
        a("s_waitcnt lgkmcnt(0)\ns_barrier")
        P = vWF
        for ct in range(2): a("ds_read_b128 %s, v31 offset:%d" % (vr(P + 4 * ct, 4), ct * 1024))
        for ct in range(2):
            for r in range(4): a("v_mul_f32 v%d, v29, v%d" % (OWN[ct] + r, OWN[ct] + r))
        a("""s_lshl_b32 s54, s47, 5
        s_lshl_b32 s55, s45, 4
        s_add_u32 s54, s54, s55
        v_and_b32 v30, 15, v0
        v_add_u32 v30, s54, v30
        v_lshlrev_b32 v30, 10, v30
        v_lshrrev_b32 v31, 4, v0
        v_and_b32 v26, 1, v31
        v_lshrrev_b32 v31, 1, v31
        v_lshlrev_b32 v26, 5, v26
        v_lshl_add_u32 v26, v31, 4, v26
        s_lshl_b32 s54, s48, 8
        s_lshl_b32 s55, s46, 6
        s_add_u32 s54, s54, s55
        v_add3_u32 v30, v30, v26, s54""")
        a("s_waitcnt lgkmcnt(0)")
        for ct in range(2):
            for r in range(4): a("v_fma_f32 v%d, v28, v%d, v%d" % (OWN[ct] + r, P + 4 * ct + r, OWN[ct] + r))
        O = vTMP
        for ct in range(2):
            a("v_cvt_pk_bf16_f32 v%d, v%d, v%d\nv_cvt_pk_bf16_f32 v%d, v%d, v%d" % (O + 2 * ct, OWN[ct], OWN[ct] + 1, O + 2 * ct + 1, OWN[ct] + 2, OWN[ct] + 3))
        a("v_permlane16_swap_b32 v%d, v%d\nv_permlane16_swap_b32 v%d, v%d" % (O, O + 2, O + 1, O + 3))
        a("buffer_store_dwordx4 %s, v30, s[28:31], 0 offen" % vr(O, 4))
        self.stamp("end")

    def finish(self):
        a = self.a
        if self.stamps and self.dbg:
            L = a.uid("Ldb")
            a("s_cmp_lg_u32 s2, %d\ns_cbranch_scc1 L_end\ns_cmp_lg_u32 s44, 0\ns_cbranch_scc1 L_end" % self.dbg_wg)
            a("s_memrealtime s[54:55]\ns_load_dwordx2 s[56:57], s[0:1], 72\ns_waitcnt lgkmcnt(0)")
            a("s_mov_b32 s24, s56\ns_and_b32 s25, s57, 0xffff\ns_mov_b32 s26, 256\ns_mov_b32 s27, 0x20000")
            a("v_mov_b32 v30, 0\ns_mov_b64 exec, 1")
            sel = list(range(1, self.nst_max))[:15]
            for k, i in enumerate(sel):
                a("s_sub_u32 s56, s%d, s%d\nv_mov_b32 v26, s56\nbuffer_store_dword v26, v30, s[24:27], 0 offen offset:%d" % (sSTAMP + i, sSTAMP, 4 * k))
            a("s_sub_u32 s56, s54, s100\nv_mov_b32 v26, s56\nbuffer_store_dword v26, v30, s[24:27], 0 offen offset:60")
            a("s_waitcnt vmcnt(0)")
        elif self.stamps:
            L = a.uid("Lst")
            a("s_memrealtime s[54:55]\ns_waitcnt lgkmcnt(0)")
            a("s_lshl_b32 s56, s2, 3\ns_add_u32 s56, s56, s44\ns_lshl_b32 s56, s56, 7\ns_add_u32 s56, s56, 0x%x" % WS_STAMP)
            a("v_mov_b32 v30, s56\ns_mov_b64 exec, 1")
            for i in range(self.nst_max):
                a("v_mov_b32 v26, s%d\nbuffer_store_dword v26, v30, s[24:27], 0 offen offset:%d" % (sSTAMP + i, 4 * i))
            a("v_mov_b32 v26, s100\nbuffer_store_dword v26, v30, s[24:27], 0 offen offset:120")
            a("v_mov_b32 v26, s54\nbuffer_store_dword v26, v30, s[24:27], 0 offen offset:124")
            a("s_waitcnt vmcnt(0)")
        a.label("L_end")
        a("s_endpgm")

    def build(self):
        a = self.a
        self.prologue()
        n0 = self.nst; names0 = list(self.stnames)
        a("s_cmp_eq_u32 s42, 1\ns_cbranch_scc1 L_type1")
        vms = []
        for ty in range(2):
            if ty == 1: a.label("L_type1")
            self.nst = n0; self.stnames = list(names0)
            vm = VM(a)
            self.prologue2(vm, ty)
            a("s_waitcnt lgkmcnt(0)\ns_add_u32 s50, s50, 1\ns_xor_b32 s51, s51, 0x9e3779b9")
            self.kv_gemm(vm, ty)
            self.k_phase(vm, ty)
            self.q_gemm(vm, ty)
            self.q_phase(ty)
            self.gather(vm, ty)
            self.o_phase(vm, ty)
            vms.append(vm)
            if ty == 0: a("s_branch L_p3")
        a.label("L_p3")
        t0 = [t for (t, c) in vms[0].q if not c][-10:]; t1 = [t for (t, c) in vms[1].q if not c][-10:]
        assert t0 == t1, (t0, t1)
        self.p3(vms[1])
        self.nst_max = self.nst
        self.finish()
        lines, sites = hazard.fix(a.lines)
        self.sites = sites
        body = "\n".join(lines) + "\n"
        hdr = open("gated_mix__linear_attn_block__linear_kernel_hedgehog__prompt.s.ref").read().split("; Override")[0].rstrip().split("\n")
        hdr.append("; @launch grid=(256,1,1) block=(512,1,1) lds=163840")
        return module(hdr, [(KN, body, 256, 102, 256)])

if __name__ == "__main__":
    import argparse
    ap = argparse.ArgumentParser(); ap.add_argument("-o", default="fused.s"); ap.add_argument("--stamps", action="store_true"); ap.add_argument("--dbg", action="store_true"); ap.add_argument("--dbgwg", type=int, default=0)
    args = ap.parse_args()
    g = Gen(stamps=args.stamps or args.dbg, dbg=args.dbg, dbg_wg=args.dbgwg)
    txt = g.build()
    open(args.o, "w").write(txt)
    print("written", args.o, len(txt), "bytes;", "stamps:", g.stnames)
    for s in g.sites[:60]: print("  nop", s)
```

```python
import sys
sys.path.insert(0, "work")
from asmgen import Asm, module
import hazard

KN = "gated_mix__linear_attn_block__linear_kernel_hedgehog__prompt_kernel"

def vr(n, k=1): return "v%d" % n if k == 1 else "v[%d:%d]" % (n, n + k - 1)
def sr(n, k=1): return "s%d" % n if k == 1 else "s[%d:%d]" % (n, n + k - 1)

WS_E = 0x0; WS_F1 = 0x1000; WS_F2 = 0x2000; WS_G = 0x4000
WS_KVB = 0x10000; WS_ZB = 0x90000; WS_KVA = 0xA0000; WS_ZA = 0xE0000
WS_O = 0x100000; WS_SIZE = 0x500000; WS_STAMP = 0x600000
SLOT = 32768
X1KV = 1 * SLOT; X1Z = 2 * SLOT
X2 = 4 * SLOT; X2Z = X2 + 16384
RBUF = 4 * SLOT; VOTE = RBUF + 16384
S_X, S_WA, S_WB, S_OA, S_OB, S_WS, S_OUT, S_PHI, S_GATE = 4, 8, 12, 16, 20, 24, 28, 32, 36
S_DBG = S_PHI
sDBGP = 52
sRB, sHG, sTY, sROT, sW, sP, sRG, sRS, sCT, sROT3 = 40, 41, 42, 43, 44, 45, 46, 47, 48, 49
sTAG = 50; sL = 52; sEPS = 53; sT0, sT1, sT2, sSPIN = 54, 55, 56, 57; sEX = 58
sXOFF = 60; sWOFF = 68; sM2K = 76; sM1K = 77; sT3 = 78; sT4 = 79
sOOFF = 80; sSTAMP = 88; sM2Q = 78; sHI = 79
vLANE = 0
vXa, vXb, vWa, vWb, vQ, vOa, vOb = 1, 2, 3, 4, 5, 6, 7
vRX = 8; vRW = 10; vRQ = 14; vRO = 16; vL16 = 18; vL = 19
vID = 20; vWPHI = 22
vA = 26
vTMP = 32
vWF = 64; vACC = 96; vX = 128

class VM:
    def __init__(self, a): self.a = a; self.q = []
    def issue(self, tag, cond=False): self.q.append((tag, cond))
    def wait(self, tag):
        idx = max(i for i, (t, c) in enumerate(self.q) if t == tag)
        n = sum(1 for (t, c) in self.q[idx + 1:] if not c)
        assert n < 64
        self.a("s_waitcnt vmcnt(%d)" % n)
    def copy(self, a=None):
        v = VM(a or self.a); v.q = list(self.q); return v

class Gen:
    def __init__(self, stamps=False, stop=None, dbg=False, dbg_wg=0, only=None, dist=2, flag_c=5, opt=(), kvm=("spread", "spread"), gstart=100, gevery=14, fill_t=-1, rot="a", p3waits={0: 1, 2: 3, 4: 5, 6: 7}):
        self.kv_modes = kvm; self.gstart = gstart; self.rot = rot; self.p3waits = p3waits; self.fill_t = fill_t; self.arr_t = 3 if fill_t < 0 else (fill_t + 4) | 1; self.gevery = gevery; self.only = only; self.dist = dist; self.flag_c = flag_c; self.opt = set(opt)
        self.dbg = dbg; self.dbg_wg = dbg_wg
        self.a = Asm(); self.stamps = stamps; self.nst = 0; self.stop = stop; self.stnames = []
    def stamp(self, name):
        if not self.stamps: return
        if self.only and name not in self.only: return
        i = self.nst; assert i < 12, name
        self.nst += 1; self.stnames.append(name)
        self.a("s_memtime s[58:59]")
        self.a("s_waitcnt lgkmcnt(0)")
        self.a("s_mov_b32 s%d, s58" % (sSTAMP + i))

    def capture(self, fn):
        saved = self.a.lines; self.a.lines = []
        fn()
        L = self.a.lines; self.a.lines = saved
        return [x.strip() for x in L]
    def weave(self, vm, main, extras, start=0, every=8):
        extras = list(extras); k = 0
        for i, x in enumerate(main):
            self.a(x)
            if i >= start and (i - start) % every == 0 and k < len(extras):
                self.emit(vm, extras[k]); k += 1
        while k < len(extras):
            self.emit(vm, extras[k]); k += 1
    def vload(self, tag, text): return ("DMA", tag, text)
    def dma(self, vm, tag, voff, srd, soff, ldsbase_s, ldsimm, extra=""):
        a = self.a
        a("s_add_u32 m0, s%d, %d" % (ldsbase_s, ldsimm))
        if isinstance(soff, int):
            a("s_mov_b32 s%d, %d" % (sT0, soff)); so = "s%d" % sT0
        else:
            a("s_nop 0"); so = soff
        a("buffer_load_dwordx4 %s, %s, %s offen%s lds" % (vr(voff), sr(srd, 4), so, extra))
        vm.issue(tag)
    def L_chunk(self, c, ty):
        if "nodma" in self.opt and c >= self.dist: return [("DMA", ("c", c), "s_nop 0")] * 4
        base = (c % 5) * SLOT
        wsrd = S_WA if ty == 0 else S_WB
        return [self.dtx(("c", c), vXa, S_X, sXOFF + c, sM2K, base),
                self.dtx(("c", c), vWa, wsrd, sWOFF + c, sM2K, base + 16384),
                self.dtx(("c", c), vXb, S_X, sXOFF + c, sM2K, base + 1024),
                self.dtx(("c", c), vWb, wsrd, sWOFF + c, sM2K, base + 16384 + 1024)]
    def L_wq(self, half, ty):
        qsrd = S_WB if ty == 0 else S_WA
        return [self.dtx(("q", half), vQ, qsrd, sWOFF + half * 4 + i, sM1K, (3 + half) * SLOT + i * 8192) for i in range(4)]
    def L_wo(self, i, slot):
        if "nowo" in self.opt: return [("DMA", ("o", i), "s_nop 0")]
        L = []
        for (kh, srd) in ((0, S_OA), (1, S_OB)):
            L.append(self.dtx(("o", i), vOa, srd, sOOFF + i, sM2K, slot * SLOT + kh * 16384))
            L.append(self.dtx(("o", i), vOb, srd, sOOFF + i, sM2K, slot * SLOT + kh * 16384 + 1024))
        return L
    def dtx(self, tag, voff, srd, so, lb, li):
        return ("DMA", tag, "s_add_u32 m0, s%d, %d\ns_nop 0\nbuffer_load_dwordx4 %s, %s, s%d offen lds" % (lb, li, vr(voff), sr(srd, 4), so))
    def emit(self, vm, x):
        if isinstance(x, tuple):
            self.a(x[2]); vm.issue(x[1], cond=(x[2] == "s_nop 0"))
        else: self.a(x)
    def now(self, vm, lst):
        for x in lst: self.emit(vm, x)
    def wo_reads(self, i, slot):
        base = slot * SLOT
        hi = base if base + 16384 > 65535 else 0
        L = []
        if hi: L += ["v_add_u32 v%d, %d, v%d" % (vA, hi, vRO), "v_add_u32 v%d, %d, v%d" % (vA + 1, hi, vRO + 1)]
        for pl in range(4):
            for ctile in range(2):
                r = vX + i * 32 + (pl * 2 + ctile) * 4
                for rd in range(2):
                    off = base - hi + pl * 4096 + rd * 2048
                    L.append("ds_read_b64_tr_b16 %s, v%d offset:%d" % (vr(r + 2 * rd, 2), (vA if hi else vRO) + ctile, off))
        return L
    def emit_wo_reads(self, i, slot):
        for x in self.wo_reads(i, slot): self.a(x)

    def prologue(self):
        a = self.a
        a("s_cmp_ge_u32 s2, 256\ns_cbranch_scc1 L_end")
        if self.stamps: a("s_memrealtime s[100:101]")
        self.stamp("start")
        for (d, off) in ((S_X, 0), (S_WA, 8), (S_WB, 32), (S_WS, 80), (S_PHI, 40), (S_OA, 16), (S_OB, 48), (S_GATE, 56), (S_OUT, 64)):
            a("s_load_dwordx2 s[%d:%d], s[0:1], %d" % (d, d + 1, off))
        ROT = {"a": "s_lshl_b32 s43, s48, 1\ns_add_u32 s43, s43, s49\ns_and_b32 s43, s43, 7",
               "0": "s_mov_b32 s43, 0",
               "r": "s_mov_b32 s43, s49",
               "r2": "s_and_b32 s43, s49, 3\ns_lshl_b32 s43, s43, 1",
               "r4": "s_and_b32 s43, s49, 1\ns_lshl_b32 s43, s43, 2",
               "h": "s_lshl_b32 s43, s48, 1",
               "h4": "s_xor_b32 s43, s48, s49\ns_and_b32 s43, s43, 1\ns_lshl_b32 s43, s43, 2",
               "b": "s_lshr_b32 s43, s49, 1\ns_lshl_b32 s43, s43, 1\ns_add_u32 s43, s43, s48\ns_and_b32 s43, s43, 7",
               }[self.rot]
        a("""v_lshrrev_b32 v19, 6, v0
        v_and_b32 v0, 63, v0
        s_and_b32 s54, s2, 7
        v_readfirstlane_b32 s44, v19
        s_lshr_b32 s55, s2, 3
        s_and_b32 s49, s55, 7
        s_lshr_b32 s48, s55, 3
        s_and_b32 s40, s54, 1
        s_lshl_b32 s40, s40, 3
        s_add_u32 s40, s40, s49
        s_lshr_b32 s41, s54, 1
        s_lshl_b32 s41, s41, 2
        s_add_u32 s41, s41, s48
        s_and_b32 s42, s41, 1
        s_lshr_b32 s41, s41, 1
        @ROT@
        v_and_b32 v26, 15, v0
        v_lshrrev_b32 v27, 4, v0""".replace("@ROT@", ROT))
        a("""v_lshrrev_b32 v28, 3, v0
        v_and_b32 v29, 7, v0
        s_lshl_b32 s56, s40, 7
        s_lshl_b32 s55, s44, 4
        s_add_u32 s56, s56, s55
        v_add_u32 v28, s56, v28
        v_lshlrev_b32 v28, 10, v28
        v_xor_b32 v30, v29, v27
        v_lshl_add_u32 v1, v30, 4, v28
        v_add_u32 v31, 4, v27
        v_xor_b32 v30, v29, v31
        v_lshl_add_u32 v2, v30, 4, v28
        v_add_u32 v2, 0x2000, v2""")
        a("""s_and_b32 s57, s44, 1
        s_lshl_b32 s55, s57, 2
        v_or_b32 v28, s55, v27
        v_lshrrev_b32 v29, 1, v26
        v_xor_b32 v28, v29, v28
        v_lshrrev_b32 v29, 2, v28
        v_lshlrev_b32 v29, 10, v29
        v_and_b32 v28, 3, v28
        v_lshl_add_u32 v29, v28, 5, v29
        v_and_b32 v28, 1, v0
        v_lshl_add_u32 v29, v28, 4, v29
        s_lshl_b32 s55, s44, 3
        v_add_u32 v28, s55, v27
        v_mul_u32_u24 v28, 0xc00, v28
        s_lshl_b32 s56, s41, 7
        s_add_u32 s56, s56, 1024
        v_add3_u32 v3, v28, v29, s56
        v_add_u32 v4, 0x3000, v3""")
        for (d, size) in ((S_X, 0x200000), (S_WA, 0x180000), (S_WB, 0x180000)):
            a("s_mov_b32 s%d, 0x%x\ns_mov_b32 s%d, 0x20000" % (d + 2, size, d + 3))
        a("s_lshl_b32 s76, s44, 11")
        for c in range(self.dist): self.rot_entry(c)
        a("s_waitcnt lgkmcnt(0)")
        self.stamp("karg")
    def rot_entry(self, c):
        self.a("s_add_u32 s54, s43, %d\ns_and_b32 s54, s54, 7\ns_lshl_b32 s%d, s54, 7\ns_mul_i32 s%d, s54, 0x30000" % (c, sXOFF + c, sWOFF + c))
    def o_addr(self, ty, dst):
        self.a("s_lshl_b32 s54, s40, 3\ns_lshl_b32 s55, s46, 1\ns_add_u32 s54, s54, s55\ns_lshl_b32 s54, s54, 5\ns_lshl_b32 s55, s41, 1\ns_add_u32 s54, s54, s55\ns_add_u32 s54, s54, s45\ns_add_u32 s54, s54, %d\ns_lshl_b32 s54, s54, 10\ns_add_u32 s54, s54, 0x%x\nv_add_u32 v%d, s54, v18" % (16 if ty == 0 else 0, WS_O, dst))
    def part_addr(self, ty, dst):
        sh = 1 if ty == 0 else 2
        self.a("s_lshl_b32 s54, s41, 4\ns_add_u32 s54, s54, s40\ns_lshl_b32 s54, s54, %d\ns_add_u32 s54, s54, s44\ns_lshl_b32 s54, s54, 10\ns_add_u32 s54, s54, 0x%x\nv_add_u32 v%d, s54, v18" % (sh, WS_KVA if ty == 0 else WS_KVB, dst))
    def z_addr(self, ty, dst):
        self.a("s_lshl_b32 s54, s41, 4\ns_add_u32 s54, s54, s40\ns_lshl_b32 s54, s54, %d\ns_add_u32 s54, s54, 0x%x\nv_add_u32 v%d, s54, v18" % (8 if ty == 0 else 9, WS_ZA if ty == 0 else WS_ZB, dst))
    def z_exec(self, ty):
        self.a("s_mov_b64 exec, 0xffff" if ty == 0 else "s_mov_b32 exec_lo, -1\ns_mov_b32 exec_hi, 0")
    def g_addr(self, dst):
        self.a("s_lshl_b32 s54, s40, 7\ns_lshl_b32 s55, s41, 4\ns_add_u32 s54, s54, s55\ns_lshl_b32 s54, s54, 2\ns_add_u32 s54, s54, 0x%x\nv_lshlrev_b32 v%d, 2, v0\nv_add_u32 v%d, s54, v%d" % (WS_G, dst, dst, dst))
    ISGATE = "s_lshr_b32 s54, s41, 1\ns_cmp_lg_u32 s44, s54\ns_cbranch_scc1 %s"

    def prologue2(self, vm, ty):
        a = self.a
        for c in range(self.dist): self.now(vm, self.L_chunk(c, ty))
        self.stamp("dma0")
        a("""s_lshr_b32 s45, s44, 2
        s_and_b32 s46, s44, 3
        s_and_b32 s54, s2, 7
        s_lshr_b32 s55, s2, 3
        s_lshr_b32 s48, s55, 2
        s_and_b32 s49, s55, 3
        s_lshl_b32 s47, s54, 2
        s_add_u32 s47, s47, s49
        s_add_u32 s49, s49, s48
        s_lshl_b32 s77, s44, 10
        s_lshl_b32 s78, s46, 11
        s_lshl_b32 s79, s45, 15
        v_lshlrev_b32 v18, 4, v0""")
        for (d, size) in ((S_WS, WS_STAMP + 0x40000 if self.stamps else WS_SIZE), (S_PHI, 0x4000), (S_OA, 0x80000), (S_OB, 0x80000), (S_GATE, 0x400), (S_OUT, 0x200000)):
            a("s_mov_b32 s%d, 0x%x\ns_mov_b32 s%d, 0x20000" % (d + 2, size, d + 3))
        a("""s_lshl_b32 s54, s41, 2
        s_lshl_b32 s55, s45, 1
        s_add_u32 s54, s54, s55
        s_lshl_b32 s54, s54, 9
        v_lshlrev_b32 v28, 5, v26
        v_lshl_add_u32 v28, v27, 3, v28
        v_add_u32 v28, s54, v28
        buffer_load_dwordx2 v[32:33], v28, s[32:35], 0 offen
        buffer_load_dwordx2 v[34:35], v28, s[32:35], 0 offen offset:512""")
        vm.issue("phi"); vm.issue("phi")
        a("v_mov_b32 v29, 0\nbuffer_load_dwordx2 v[48:49], v29, s[24:27], 0 offen"); vm.issue("epoch")
        self.fill_part(vm, ty)
        for c in range(self.dist, 8): self.rot_entry(c)
        for c in range(4):
            a("s_add_u32 s54, s49, %d\ns_and_b32 s54, s54, 3\ns_lshl_b32 s%d, s54, 17" % (c, sOOFF + c))
        a("""s_and_b32 s57, s44, 1
        s_lshl_b32 s55, s57, 1
        v_and_b32 v28, 1, v27
        v_or_b32 v28, s55, v28
        v_bfe_u32 v29, v0, 1, 2
        v_xor_b32 v28, v29, v28
        v_lshlrev_b32 v28, 5, v28
        v_and_b32 v29, 1, v0
        v_lshl_add_u32 v28, v29, 4, v28
        v_lshrrev_b32 v29, 3, v0
        s_lshl_b32 s55, s44, 3
        v_add_u32 v29, s55, v29
        v_mul_u32_u24 v29, 0xc00, v29
        s_lshl_b32 s56, s41, 7
        v_add3_u32 v5, v28, v29, s56""")
        a("""s_lshl_b32 s54, s46, 5
        v_add_u32 v28, s54, v26
        v_lshlrev_b32 v28, 7, v28
        v_lshrrev_b32 v29, 1, v26
        v_xor_b32 v30, v27, v29
        v_lshl_add_u32 v8, v30, 4, v28
        v_xor_b32 v9, 64, v8""")
        a("""v_lshrrev_b32 v28, 2, v26
        v_and_b32 v29, 1, v27
        v_lshl_or_b32 v29, v29, 2, v28
        v_lshl_add_u32 v30, v27, 3, v28
        v_lshlrev_b32 v30, 8, v30
        v_and_b32 v31, 3, v26
        v_lshl_add_u32 v30, v31, 3, v30
        v_add_u32 v30, 0x4000, v30
        s_lshl_b32 s54, s45, 1""")
        for c in range(4):
            ctw = (c & 1) + (4 if c >= 2 else 0)
            a("s_add_u32 s55, s54, %d\nv_xor_b32 v19, s55, v29\nv_lshl_add_u32 v%d, v19, 5, v30" % (ctw, vRW + c))
        a("""v_lshrrev_b32 v28, 3, v26
        v_and_b32 v29, 1, v27
        v_lshl_or_b32 v29, v29, 1, v28
        v_lshrrev_b32 v28, 2, v26
        v_lshl_add_u32 v30, v27, 3, v28
        v_lshlrev_b32 v30, 7, v30
        v_lshl_add_u32 v30, v31, 3, v30
        v_add_u32 v30, 0x18000, v30""")
        for j in range(2):
            a("s_add_u32 s55, s54, %d\nv_xor_b32 v19, s55, v29\nv_lshl_add_u32 v%d, v19, 5, v30" % (j, vRQ + j))
        a("""v_lshrrev_b32 v28, 3, v0
        s_lshl_b32 s54, s44, 4
        v_add_u32 v28, s54, v28
        v_lshlrev_b32 v28, 10, v28
        s_lshl_b32 s55, s48, 7
        v_add_u32 v28, s55, v28
        v_and_b32 v29, 1, v0
        v_lshl_add_u32 v28, v29, 4, v28
        v_bfe_u32 v29, v0, 1, 2
        v_xor_b32 v30, v29, v27
        v_lshl_add_u32 v6, v30, 5, v28
        v_add_u32 v7, 0x2000, v6""")
        a("""v_lshrrev_b32 v28, 2, v26
        v_lshl_add_u32 v30, v27, 2, v28
        v_lshlrev_b32 v30, 7, v30
        v_and_b32 v31, 3, v26
        v_lshl_add_u32 v30, v31, 3, v30
        s_lshl_b32 s54, s45, 14
        v_add_u32 v30, s54, v30
        v_and_b32 v29, 1, v27
        v_lshrrev_b32 v28, 3, v26
        v_lshl_or_b32 v29, v29, 1, v28
        s_and_b32 s54, s44, 1
        s_lshl_b32 s54, s54, 1""")
        for ctile in range(2):
            a("s_add_u32 s55, s54, %d\nv_xor_b32 v19, s55, v29\nv_lshl_add_u32 v%d, v19, 5, v30" % (ctile, vRO + ctile))
        a("v_mov_b32 v19, 0x3fb8aa3b")
        a("""v_lshlrev_b32 v28, 2, v27
        v_sub_u32 v28, v26, v28
        v_mov_b32 v29, 0x3f80
        v_mov_b32 v30, 0x3f800000
        v_cmp_eq_u32 vcc, 0, v28
        v_cndmask_b32 v20, 0, v29, vcc
        v_cmp_eq_u32 vcc, 1, v28
        v_cndmask_b32 v20, v20, v30, vcc
        v_cmp_eq_u32 vcc, 2, v28
        v_cndmask_b32 v21, 0, v29, vcc
        v_cmp_eq_u32 vcc, 3, v28
        v_cndmask_b32 v21, v21, v30, vcc""")

    def fill_part(self, vm, ty):
        a = self.a
        if "nofill" in self.opt:
            vm.issue("fill", cond=True); return
        nred = 2 if ty == 0 else 4
        Lz = a.uid("Lfz"); Le = a.uid("Lfe")
        a("s_cmp_gt_u32 s44, 4\ns_cbranch_scc1 %s" % Le)
        a("v_mov_b32 v44, -1\nv_mov_b32 v45, -1\nv_mov_b32 v46, -1\nv_mov_b32 v47, -1")
        a("s_cmp_ge_u32 s44, %d\ns_cbranch_scc1 %s" % (nred, Lz))
        self.part_addr(ty, 30)
        a("buffer_store_dwordx4 v[44:47], v30, s[24:27], 0 offen sc1"); vm.issue("fill", cond=True)
        a.label(Lz)
        a("s_cmp_lg_u32 s44, 4\ns_cbranch_scc1 %s" % Le)
        self.z_addr(ty, 30); self.z_exec(ty)
        a("buffer_store_dwordx4 v[44:47], v30, s[24:27], 0 offen sc1\ns_mov_b64 exec, -1"); vm.issue("fill", cond=True)
        a.label(Le)
    def fill_o(self, vm, ty):
        a = self.a
        if "nofill" in self.opt:
            vm.issue("fillo", cond=True); return
        a("v_mov_b32 v56, -1\nv_mov_b32 v57, -1\nv_mov_b32 v58, -1\nv_mov_b32 v59, -1")
        self.o_addr(ty, 30)
        a("s_mov_b32 s55, 0x8000\nbuffer_store_dwordx4 v[56:59], v30, s[24:27], 0 offen sc1\nbuffer_store_dwordx4 v[56:59], v30, s[24:27], s55 offen sc1")
        vm.issue("fillo"); vm.issue("fillo")
        if ty == 1:
            Lg = a.uid("Lfg")
            a(self.ISGATE % Lg)
            self.g_addr(30)
            a("s_mov_b64 exec, 0xffff\nbuffer_store_dword v56, v30, s[24:27], 0 offen sc1\ns_mov_b64 exec, -1"); vm.issue("fillo", cond=True)
            a.label(Lg)

    def late_setup(self, vm):
        a = self.a
        vm.wait("phi")
        a("""v_mfma_f32_16x16x16_bf16 v[36:39], v[32:33], v[20:21], 0
        v_mfma_f32_16x16x16_bf16 v[40:43], v[34:35], v[20:21], 0""")
    def late_setup2(self):
        a = self.a
        a("""v_cvt_pk_bf16_f32 v22, v36, v37
        v_cvt_pk_bf16_f32 v23, v38, v39
        v_cvt_pk_bf16_f32 v24, v40, v41
        v_cvt_pk_bf16_f32 v25, v42, v43""")
    IDX_F1 = "s_lshl_b32 s54, s42, 3\ns_add_u32 s54, s54, s41\ns_lshl_b32 s54, s54, 4\ns_add_u32 s54, s54, s40\ns_lshl_b32 s54, s54, 3"
    IDX_F2 = "s_lshl_b32 s54, s40, 4\ns_lshl_b32 s55, s42, 3\ns_add_u32 s54, s54, s55\ns_add_u32 s54, s54, s41\ns_lshl_b32 s54, s54, 3"
    LINE_F1 = "s_xor_b32 s54, s42, 1\ns_lshl_b32 s54, s54, 3\ns_add_u32 s54, s54, s41\ns_lshl_b32 s54, s54, 7"
    LINE_F2 = "s_lshr_b32 s54, s47, 1\ns_lshl_b32 s54, s54, 7"
    def tag_setup(self, vm):
        a = self.a
        vm.wait("epoch")
        a("v_readfirstlane_b32 s50, v48\nv_readfirstlane_b32 s51, v49\ns_nop 1\ns_add_u32 s50, s50, 1\ns_xor_b32 s51, s51, 0x9e3779b9")
    def set_flag(self, vm, base, idx_code):
        a = self.a; L = a.uid("Lfl")
        a("s_cmp_lg_u32 s44, 5\ns_cbranch_scc1 %s" % L)
        a(idx_code)
        a("s_add_u32 s54, s54, 0x%x\nv_mov_b32 v30, s54\nv_mov_b32 v28, s50\nv_mov_b32 v29, s51" % base)
        a("s_mov_b64 exec, 1\nbuffer_store_dwordx2 v[28:29], v30, s[24:27], 0 offen sc1\ns_mov_b64 exec, -1")
        vm.issue("flag", cond=True)
        a.label(L)
    def mark_addr(self, base, line_code):
        self.a(line_code)
        self.a("s_add_u32 s54, s54, 0x%x\nv_and_b32 v30, 15, v0\nv_lshlrev_b32 v30, 3, v30\nv_add_u32 v30, s54, v30" % base)
    def count_load(self, vm, reg, base, line_code):
        a = self.a; L = a.uid("Lcl")
        a("s_cmp_lg_u32 s44, 5\ns_cbranch_scc1 %s" % L)
        self.mark_addr(base, line_code)
        a("buffer_load_dwordx2 v[%d:%d], v30, s[24:27], 0 offen sc1" % (reg, reg + 1))
        vm.issue("cnt", cond=True)
        a.label(L)
    def count_check(self, vm, reg, base, line_code):
        a = self.a; L = a.uid("Lcc"); Lp = a.uid("Lcp")
        a("s_cmp_lg_u32 s44, 5\ns_cbranch_scc1 %s" % L)
        vm.wait("cnt")
        a("s_mov_b32 s57, 0")
        a.label(Lp)
        a("v_cmp_eq_u64 vcc, s[50:51], v[%d:%d]\ns_cmp_eq_u64 vcc, -1\ns_cbranch_scc1 %s" % (reg, reg + 1, L))
        self.mark_addr(base, line_code)
        a("buffer_load_dwordx2 v[%d:%d], v30, s[24:27], 0 offen sc1\ns_add_u32 s57, s57, 1\ns_waitcnt vmcnt(0)" % (reg, reg + 1))
        a("s_cmp_lt_u32 s57, 0x40000\ns_cbranch_scc1 %s" % Lp)
        a.label(L)

    def kv_reads(self, t):
        kk = t & 1; b = t & 1; L = []
        if "noread" in self.opt and t > 0: return L
        for tile in range(2):
            L.append("ds_read_b128 %s, v%d offset:%d" % (vr(vX + (2 * t + tile) * 4, 4), vRX + kk, tile * 2048))
        for c in range(4):
            for rd in range(2):
                L.append("ds_read_b64_tr_b16 %s, v%d offset:%d" % (vr(vWF + b * 16 + c * 4 + 2 * rd, 2), vRW + c, kk * 8192 + rd * 1024))
        return L
    def kv_mfmas(self, t, ty):
        b = t & 1; L = []
        if "nomfma" in self.opt and t > 0: return ["s_nop 0"] * 8
        for c in range(4):
            for tile in range(2):
                d = vr(vACC + (c * 2 + tile) * 4, 4); w = vr(vWF + b * 16 + c * 4, 4); x = vr(vX + (2 * t + tile) * 4, 4)
                cc = "0" if t == 0 else d
                if ty == 1 and c < 2: L.append("v_mfma_f32_16x16x32_bf16 %s, %s, %s, %s" % (d, w, x, cc))
                else: L.append("v_mfma_f32_16x16x32_bf16 %s, %s, %s, %s" % (d, x, w, cc))
        return L
    def interleave(self, m, r, vm=None, dm=(), early=2, mode="spread"):
        a = self.a; i = 0; n = len(m); dm = list(dm)
        pos = {}
        if mode == "early":
            for d in dm: self.emit(vm, d)
        elif mode == "spread":
            for k, d in enumerate(dm): pos.setdefault(min(n - 1, (n * (2 * k + 1)) // (2 * len(dm))), []).append(d)
        elif isinstance(mode, tuple):
            for k, d in enumerate(dm): pos.setdefault(mode[min(k, len(mode) - 1)], []).append(d)
        for k, x in enumerate(m):
            a(x)
            for _ in range(early):
                if i < len(r): a(r[i]); i += 1
            for d in pos.get(k, []): self.emit(vm, d)
        while i < len(r): a(r[i]); i += 1
        if mode == "late":
            for d in dm: self.emit(vm, d)
    def adv_slot(self, c):
        d = ((c % 5) - ((c - 1) % 5)) * SLOT
        for r in (vRX, vRX + 1, vRW, vRW + 1, vRW + 2, vRW + 3):
            if d > 0: self.a("v_add_u32 v%d, 0x%x, v%d" % (r, d, r))
            else: self.a("v_subrev_u32 v%d, 0x%x, v%d" % (r, -d, r))
    def kv_gemm(self, vm, ty):
        a = self.a
        modes = self.kv_modes
        if modes[0] == modes[1]:
            self.kv_loop(vm, ty, modes[0]); return
        L1 = a.uid("Lkv1"); Lj = a.uid("Lkvj")
        a("s_cmp_eq_u32 s45, 1\ns_cbranch_scc1 %s" % L1)
        n0 = self.nst; nm0 = list(self.stnames)
        vm0 = vm.copy()
        self.kv_loop(vm0, ty, modes[0])
        a("s_branch %s" % Lj)
        a.label(L1)
        self.nst = n0; self.stnames = nm0
        self.kv_loop(vm, ty, modes[1])
        a.label(Lj)
        assert [t for t, c in vm.q] == [t for t, c in vm0.q]
    def kv_loop(self, vm, ty, mode):
        a = self.a; D = self.dist
        items = [self.L_chunk(c, ty) for c in range(D, 8)] + [self.L_wq(0, ty), self.L_wq(1, ty)]
        vm.wait(("c", 0)); a("s_barrier")
        self.stamp("c0")
        for x in self.kv_reads(0): a(x)
        pend = items.pop(0)
        for t in range(16):
            a("s_waitcnt lgkmcnt(0)")
            if t == 15:
                a("s_barrier"); nxt = []
                if "wo0late" not in self.opt: pend = pend + self.L_wo(0, 0)
            else:
                if t & 1:
                    c = (t + 1) // 2
                    assert not pend
                    vm.wait(("c", c))
                    if "nobar" not in self.opt: a("s_barrier")
                    pend = items.pop(0) if items else []
                    self.adv_slot(c)
                nxt = self.kv_reads(t + 1)
            if t == 0: dm, pend = pend, []
            elif t == 15: dm, pend = pend, []
            elif t & 1: dm, pend = pend[:2], pend[2:]
            else: dm, pend = pend, []
            if t == 3: self.tag_setup(vm); self.set_flag(vm, WS_F1, self.IDX_F1)
            if t == 4: self.late_setup(vm)
            if t == 6: self.late_setup2()
            self.interleave(self.kv_mfmas(t, ty), nxt, vm, dm, mode=mode)
        assert not items and not pend
        self.fill_o(vm, ty)
        self.stamp("kv")

    def elu1(self, regs):
        a = self.a; n = len(regs)
        for i, r in enumerate(regs): a("v_mul_f32 v%d, v%d, v%d" % (vTMP + 16 + i, vL, r))
        for i, r in enumerate(regs): a("v_exp_f32_e64 v%d, v%d clamp" % (vTMP + 16 + i, vTMP + 16 + i))
        for i, r in enumerate(regs): a("v_max_f32 v%d, 0, v%d" % (r, r))
        for i, r in enumerate(regs): a("v_add_f32 v%d, 0x358637bd, v%d" % (vTMP + 16 + i, vTMP + 16 + i))
        for i, r in enumerate(regs): a("v_add_f32 v%d, v%d, v%d" % (r, r, vTMP + 16 + i))
    def xreduce(self, op, A, B, C):
        a = self.a; n = len(A)
        for k in range(n): a("v_permlane16_swap_b32 v%d, v%d" % (A[k], B[k]))
        for k in range(n): a("%s v%d, v%d, v%d" % (op, A[k], A[k], B[k]))
        for k in range(n): a("v_mov_b32 v%d, v%d" % (B[k], A[k]))
        for k in range(n): a("v_permlane32_swap_b32 v%d, v%d" % (A[k], B[k]))
        for k in range(n): a("%s v%d, v%d, v%d" % (op, A[k], A[k], B[k]))
        for k in range(n): a("v_mov_b32 v%d, v%d" % (B[k], A[k]))
        for k in range(n): a("v_permlane16_swap_b32 v%d, v%d" % (A[k], B[k]))
    def hedgehog(self, acc, out, tn):
        a = self.a; n = 4
        cv = [vWF + 2 * k for k in range(n)]
        M = [vWF + 8 + k for k in range(n)]; N = [vWF + 12 + k for k in range(n)]
        for k in range(n):
            a("v_cvt_pk_bf16_f32 v%d, v%d, v%d" % (cv[k], acc[k], acc[k] + 1))
            a("v_cvt_pk_bf16_f32 v%d, v%d, v%d" % (cv[k] + 1, acc[k] + 2, acc[k] + 3))
        for k in range(n):
            j = k >> 1
            a("v_mfma_f32_16x16x16_bf16 %s, %s, %s, 0" % (vr(acc[k], 4), vr(vWPHI + 2 * j, 2), vr(cv[k], 2)))
        for k in range(n): a("v_max3_f32 v%d, v%d, v%d, v%d" % (M[k], acc[k], acc[k] + 1, acc[k] + 2))
        for k in range(n): a("v_max3_f32 v%d, -v%d, -v%d, -v%d" % (N[k], acc[k], acc[k] + 1, acc[k] + 2))
        for k in range(n): a("v_max_f32 v%d, v%d, v%d" % (M[k], M[k], acc[k] + 3))
        for k in range(n): a("v_max_f32_e64 v%d, v%d, -v%d" % (N[k], N[k], acc[k] + 3))
        self.xreduce("v_max_f32", M, N, None)
        for k in range(n): a("v_mul_f32 v%d, v%d, v%d" % (M[k], vL, M[k]))
        for k in range(n): a("v_mul_f32 v%d, v%d, v%d" % (N[k], vL, N[k]))
        for k in range(n):
            for r in range(4): a("v_fma_f32 v%d, -v%d, v%d, -v%d" % (tn + 4 * k + r, acc[k] + r, vL, N[k]))
        for k in range(n):
            for r in range(4): a("v_fma_f32 v%d, v%d, v%d, -v%d" % (acc[k] + r, acc[k] + r, vL, M[k]))
        for k in range(n):
            for r in range(4): a("v_exp_f32 v%d, v%d" % (tn + 4 * k + r, tn + 4 * k + r))
        for k in range(n):
            for r in range(4): a("v_exp_f32 v%d, v%d" % (acc[k] + r, acc[k] + r))
        for k in range(n): a("v_add_f32 v%d, v%d, v%d" % (N[k], tn + 4 * k, tn + 4 * k + 1))
        for k in range(n): a("v_add_f32 v%d, v%d, v%d" % (M[k], acc[k], acc[k] + 1))
        for k in range(n): a("v_add_f32 v%d, v%d, v%d" % (N[k], N[k], tn + 4 * k + 2))
        for k in range(n): a("v_add_f32 v%d, v%d, v%d" % (M[k], M[k], acc[k] + 2))
        for k in range(n): a("v_add_f32 v%d, v%d, v%d" % (N[k], N[k], tn + 4 * k + 3))
        for k in range(n): a("v_add_f32 v%d, v%d, v%d" % (M[k], M[k], acc[k] + 3))
        self.xreduce("v_add_f32", M, N, None)
        for k in range(n): a("v_rcp_f32 v%d, v%d" % (M[k], M[k]))
        for k in range(n): a("v_rcp_f32 v%d, v%d" % (N[k], N[k]))
        for k in range(n):
            for r in range(4): a("v_mul_f32 v%d, v%d, v%d" % (acc[k] + r, acc[k] + r, M[k]))
        for k in range(n):
            for r in range(4): a("v_mul_f32 v%d, v%d, v%d" % (tn + 4 * k + r, tn + 4 * k + r, N[k]))
        for k in range(n):
            a("v_cvt_pk_bf16_f32 v%d, v%d, v%d" % (out[k], acc[k], acc[k] + 1))
            a("v_cvt_pk_bf16_f32 v%d, v%d, v%d" % (out[k] + 1, acc[k] + 2, acc[k] + 3))
            a("v_cvt_pk_bf16_f32 v%d, v%d, v%d" % (out[k] + 2, tn + 4 * k, tn + 4 * k + 1))
            a("v_cvt_pk_bf16_f32 v%d, v%d, v%d" % (out[k] + 3, tn + 4 * k + 2, tn + 4 * k + 3))

    def k_phase(self, vm, ty):
        a = self.a
        K = lambda j, t: vACC + (j * 2 + t) * 4
        V = lambda j, t: vACC + ((2 + j) * 2 + t) * 4
        VP = [vTMP, vTMP + 4]
        self.count_load(vm, 20 if ty == 0 else 62, WS_F1, self.LINE_F1)
        for j in range(2):
            for t in range(2):
                a("v_cvt_pk_bf16_f32 v%d, v%d, v%d" % (VP[j] + 2 * t, V(j, t), V(j, t) + 1))
                a("v_cvt_pk_bf16_f32 v%d, v%d, v%d" % (VP[j] + 2 * t + 1, V(j, t) + 2, V(j, t) + 3))
        ONES = vA
        if ty == 0:
            self.elu1([K(j, t) + r for j in range(2) for t in range(2) for r in range(4)])
            PK = [vTMP + 8, vTMP + 12]
            for j in range(2):
                for t in range(2):
                    a("v_cvt_pk_bf16_f32 v%d, v%d, v%d" % (PK[j] + 2 * t, K(j, t), K(j, t) + 1))
                    a("v_cvt_pk_bf16_f32 v%d, v%d, v%d" % (PK[j] + 2 * t + 1, K(j, t) + 2, K(j, t) + 3))
            for r in range(4): a("v_mov_b32 v%d, 0x3f803f80" % (ONES + r))
            KVT = [vACC, vACC + 4]; ZT = [vACC + 8, vACC + 12]
            for j in range(2): a("v_mfma_f32_16x16x32_bf16 %s, %s, %s, 0" % (vr(KVT[j], 4), vr(PK[j], 4), vr(VP[j], 4)))
            for j in range(2): a("v_mfma_f32_16x16x32_bf16 %s, %s, %s, 0" % (vr(ZT[j], 4), vr(PK[j], 4), vr(ONES, 4)))
        else:
            PH = [vTMP + 8 + 4 * k for k in range(4)]
            TN = vACC + 16
            self.hedgehog([K(j, t) for j in range(2) for t in range(2)], PH, TN)
            TD = [vACC + 4 * q for q in range(8)]
            for k in range(4):
                for sg in range(2):
                    a("v_mfma_f32_16x16x16_bf16 %s, %s, %s, 0" % (vr(TD[k * 2 + sg], 4), vr(PH[k] + 2 * sg, 2), vr(vID, 2)))
            for r in range(4): a("v_mov_b32 v%d, 0x3f803f80" % (ONES + r))
            TP = [vWF + 4 * q for q in range(4)]
            for j in range(2):
                for t in range(2):
                    for sg in range(2):
                        d = TD[(j * 2 + t) * 2 + sg]; o = TP[j * 2 + sg] + 2 * t
                        a("v_cvt_pk_bf16_f32 v%d, v%d, v%d" % (o, d, d + 1))
                        a("v_cvt_pk_bf16_f32 v%d, v%d, v%d" % (o + 1, d + 2, d + 3))
            KVT = [vACC + 4 * q for q in range(4)]; ZT = [vACC + 16 + 4 * q for q in range(4)]
            for q in range(4): a("v_mfma_f32_16x16x32_bf16 %s, %s, %s, 0" % (vr(KVT[q], 4), vr(TP[q], 4), vr(VP[q >> 1], 4)))
            for q in range(4): a("v_mfma_f32_16x16x32_bf16 %s, %s, %s, 0" % (vr(ZT[q], 4), vr(TP[q], 4), vr(ONES, 4)))
        for q in range(1, len(ZT)):
            m = 0x000f000f << (4 * q)
            a("s_mov_b32 exec_lo, 0x%x\ns_mov_b32 exec_hi, 0x%x" % (m, m))
            for r in range(4): a("v_mov_b32 v%d, v%d" % (ZT[0] + r, ZT[q] + r))
        a("s_mov_b64 exec, -1")
        a("s_lshl_b32 s54, s44, 12\ns_add_u32 s54, s54, 0x%x\nv_add_u32 v30, s54, v18" % X1KV)
        a("s_lshl_b32 s54, s44, 10\ns_add_u32 s54, s54, 0x%x\nv_add_u32 v31, s54, v18" % X1Z)
        for q, r in enumerate(KVT): a("ds_write_b128 v30, %s offset:%d" % (vr(r, 4), q * 1024))
        a("ds_write_b128 v31, %s" % vr(ZT[0], 4))
        vm.wait(("q", 1))
        a("s_waitcnt lgkmcnt(0)\ns_barrier")
        self.stamp("x1")
        nred = 2 if ty == 0 else 4
        Lz = a.uid("Lz"); Le = a.uid("Lred")
        a("s_cmp_ge_u32 s44, %d\ns_cbranch_scc1 %s" % (nred, Lz))
        R = vTMP
        if ty == 0:
            a("s_lshl_b32 s54, s44, 14\ns_add_u32 s54, s54, 0x%x\nv_add_u32 v30, s54, v18" % X1KV)
            offs = [[rg * 4096 + h * 1024 for rg in range(4)] for h in range(2)]
        else:
            a("s_lshr_b32 s54, s44, 1\ns_lshl_b32 s54, s54, 14\ns_and_b32 s55, s44, 1\ns_lshl_b32 s55, s55, 11\ns_add_u32 s54, s54, s55\ns_add_u32 s54, s54, 0x%x\nv_add_u32 v30, s54, v18" % X1KV)
            offs = [[rg * 4096 + h * 1024 for rg in range(4)] for h in range(2)]
        for h in range(2):
            for rg in range(4): a("ds_read_b128 %s, v30 offset:%d" % (vr(R + (h * 4 + rg) * 4, 4), offs[h][rg]))
        self.part_addr(ty, 31)
        a("s_waitcnt lgkmcnt(0)")
        for h in range(2):
            for r in range(4): a("v_add_f32 v%d, v%d, v%d" % (R + h * 16 + r, R + h * 16 + r, R + h * 16 + 4 + r))
            for r in range(4): a("v_add_f32 v%d, v%d, v%d" % (R + h * 16 + 8 + r, R + h * 16 + 8 + r, R + h * 16 + 12 + r))
        for h in range(2):
            for r in range(4): a("v_add_f32 v%d, v%d, v%d" % (R + h * 16 + r, R + h * 16 + r, R + h * 16 + 8 + r))
        a("v_cvt_pk_bf16_f32 v26, v%d, v%d\nv_cvt_pk_bf16_f32 v27, v%d, v%d" % (R, R + 1, R + 2, R + 3))
        a("v_cvt_pk_bf16_f32 v28, v%d, v%d\nv_cvt_pk_bf16_f32 v29, v%d, v%d" % (R + 16, R + 17, R + 18, R + 19))
        a("buffer_store_dwordx4 v[26:29], v31, s[24:27], 0 offen sc1")
        vm.issue("part", cond=True)
        a("s_branch %s" % Le)
        a.label(Lz)
        a("s_cmp_lg_u32 s44, 4\ns_cbranch_scc1 %s" % Le)
        nl = 16 if ty == 0 else 32
        if ty == 0:
            a("v_lshrrev_b32 v30, 3, v0\nv_lshlrev_b32 v30, 12, v30\nv_and_b32 v31, 3, v0\nv_lshl_add_u32 v30, v31, 8, v30\nv_bfe_u32 v31, v0, 2, 1\nv_lshl_add_u32 v30, v31, 6, v30\nv_add_u32 v30, 0x%x, v30" % X1Z)
            self.z_addr(ty, 31); self.z_exec(ty)
        else:
            a("v_lshrrev_b32 v30, 4, v0\nv_lshlrev_b32 v30, 12, v30\nv_and_b32 v31, 3, v0\nv_lshl_add_u32 v30, v31, 8, v30\nv_bfe_u32 v31, v0, 2, 2\nv_lshl_add_u32 v30, v31, 6, v30\nv_add_u32 v30, 0x%x, v30" % X1Z)
            self.z_addr(ty, 31); self.z_exec(ty)
        for rg in range(4): a("ds_read_b128 %s, v30 offset:%d" % (vr(R + rg * 4, 4), rg * 1024))
        a("s_waitcnt lgkmcnt(0)")
        for r in range(4): a("v_add_f32 v%d, v%d, v%d" % (R + r, R + r, R + 4 + r))
        for r in range(4): a("v_add_f32 v%d, v%d, v%d" % (R + 8 + r, R + 8 + r, R + 12 + r))
        for r in range(4): a("v_add_f32 v%d, v%d, v%d" % (R + r, R + r, R + 8 + r))
        a("buffer_store_dwordx4 %s, v31, s[24:27], 0 offen sc1" % vr(R, 4))
        vm.issue("part", cond=True)
        a("s_mov_b64 exec, -1")
        a.label(Le)
        self.stamp("red")

    def q_reads(self, c):
        b = c & 1; L = []
        for kk in range(2):
            for j in range(2):
                for rd in range(2):
                    L.append("ds_read_b64_tr_b16 %s, v%d offset:%d" % (vr(vWF + b * 16 + (kk * 2 + j) * 4 + 2 * rd, 2), vRQ + j, (c & 3) * 8192 + kk * 4096 + rd * 512))
        return L
    def q_mfmas(self, c):
        b = c & 1; L = []
        for kk in range(2):
            for j in range(2):
                for tile in range(2):
                    d = vr(vACC + (j * 2 + tile) * 4, 4); w = vr(vWF + b * 16 + (kk * 2 + j) * 4, 4); x = vr(vX + (2 * (2 * c + kk) + tile) * 4, 4)
                    cc = "0" if (c == 0 and kk == 0) else d
                    L.append("v_mfma_f32_16x16x32_bf16 %s, %s, %s, %s" % (d, w, x, cc))
        return L
    def gather_items(self, ty):
        if ty == 0: n, G, step = 8, vX + 96, 4096
        else: n, G, step = 4, vACC + 16, 2048
        return [self.vload("gath", "s_mov_b32 s55, %d\nbuffer_load_dwordx4 %s, v31, s[24:27], s55 offen sc1" % (i * step, vr(G + 4 * i, 4))) for i in range(n)], n, G
    def gather_addr(self, ty):
        a = self.a
        if ty == 0:
            a("s_lshl_b32 s54, s41, 4\ns_and_b32 s55, s44, 1\ns_lshl_b32 s55, s55, 3\ns_add_u32 s54, s54, s55\ns_lshl_b32 s54, s54, 2\ns_lshr_b32 s55, s44, 1\ns_add_u32 s54, s54, s55\ns_lshl_b32 s54, s54, 10\ns_add_u32 s54, s54, 0x%x\nv_add_u32 v31, s54, v18" % WS_KVB)
        else:
            a("s_lshl_b32 s54, s41, 4\ns_and_b32 s55, s44, 3\ns_lshl_b32 s55, s55, 2\ns_add_u32 s54, s54, s55\ns_lshl_b32 s54, s54, 1\ns_lshr_b32 s55, s44, 2\ns_add_u32 s54, s54, s55\ns_lshl_b32 s54, s54, 10\ns_add_u32 s54, s54, 0x%x\nv_add_u32 v31, s54, v18" % WS_KVA)
    def z_regs(self, ty): return (vWF + 16) if ty == 0 else vTMP
    def z_loads(self, vm, ty, cond=True):
        a = self.a; Z = self.z_regs(ty)
        if ty == 0:
            a("s_lshl_b32 s54, s41, 4\ns_and_b32 s55, s44, 1\ns_lshl_b32 s55, s55, 3\ns_add_u32 s54, s54, s55\ns_lshl_b32 s54, s54, 9\ns_add_u32 s54, s54, 0x%x\nv_add_u32 v29, s54, v18" % WS_ZB)
        else:
            a("s_lshl_b32 s54, s41, 12\ns_add_u32 s54, s54, 0x%x\nv_add_u32 v29, s54, v18" % WS_ZA)
        for i in range(4):
            a("s_mov_b32 s55, %d\nbuffer_load_dwordx4 %s, v29, s[24:27], s55 offen sc1" % (i * 1024, vr(Z + 4 * i, 4))); vm.issue("gz", cond=True)
    def z_skip(self, ty, L): self.a("s_cmp_lt_u32 s44, %d\ns_cbranch_scc1 %s" % (6 if ty == 0 else 7, L))
    def sentinel_check(self, regs, acc, first=True):
        a = self.a; regs = list(regs)
        if first:
            a("v_max3_u32 v%d, v%d, v%d, v%d" % (acc, regs[0], regs[1], regs[2])); regs = regs[3:]
        while len(regs) >= 2:
            a("v_max3_u32 v%d, v%d, v%d, v%d" % (acc, acc, regs[0], regs[1])); regs = regs[2:]
        if regs: a("v_max_u32 v%d, v%d, v%d" % (acc, acc, regs[0]))

    def q_gemm(self, vm, ty):
        a = self.a
        GF = [vTMP + 4 * i for i in range(8)]
        def gload(reg, t):
            a("buffer_load_dwordx4 %s, v30, s[36:39], s%d offen offset:%d" % (vr(reg, 4), sXOFF + (t >> 1), (t & 1) * 64)); vm.issue("gate", cond=True)
        Xr = lambda t, tile: vX + (2 * t + tile) * 4
        if ty == 1:
            Lg = a.uid("Lgl")
            a(self.ISGATE % Lg)
            a("v_lshrrev_b32 v30, 4, v0\nv_lshlrev_b32 v30, 4, v30")
            for t in range(8): gload(GF[t], t)
            a.label(Lg)
        for x in self.q_reads(0): a(x)
        pend = []
        for c in range(8):
            a("s_waitcnt lgkmcnt(0)")
            if c == 2:
                self.count_check(vm, 20 if ty == 0 else 62, WS_F1, self.LINE_F1)
                a("s_barrier")
                pend = self.L_wo(1, 1) + self.L_wo(2, 2)
                if ty == 1:
                    Lz = a.uid("Lzl"); self.z_skip(ty, Lz); self.z_loads(vm, ty); a.label(Lz)
                    self.gather_addr(ty)
                    gi, n, G = self.gather_items(ty)
                    pend = gi[:2] + pend[:4] + gi[2:] + pend[4:]
            if c == 4:
                a("s_barrier")
                pend = pend + self.L_wo(3, 3)
            if c == 4 and ty == 1:
                Lg = a.uid("Lgl"); L1 = a.uid("Lg1")
                a(self.ISGATE % Lg)
                a("v_lshrrev_b32 v30, 4, v0\nv_lshlrev_b32 v30, 4, v30\ns_and_b32 s54, s41, 1\ns_cmp_eq_u32 s54, 1\ns_cbranch_scc1 %s" % L1)
                for t in range(8, 16): gload(Xr(t - 8, 1), t)
                a("s_branch %s" % Lg)
                a.label(L1)
                for t in range(8, 16): gload(Xr(t - 8, 0), t)
                a.label(Lg)
            nxt = self.q_reads(c + 1) if c < 7 else []
            if c == 3:
                for j in range(2): a("v_add_u32 v%d, 0x8000, v%d" % (vRQ + j, vRQ + j))
            n = len(pend) if c == 7 else min(3 if ty == 1 else 2, len(pend))
            dm, pend = pend[:n], pend[n:]
            self.interleave(self.q_mfmas(c), nxt, vm, dm)
        self.stamp("q")
        if ty == 1:
            Lg = a.uid("Lgm"); L1 = a.uid("Lg1"); L2 = a.uid("Lg2")
            a(self.ISGATE % Lg)
            vm.wait("gate")
            a("s_and_b32 s54, s41, 1\ns_cmp_eq_u32 s54, 1\ns_cbranch_scc1 %s" % L1)
            for tile, lab in ((0, None), (1, L1)):
                if lab: a.label(lab)
                GA = GF + [Xr(t, 1 - tile) for t in range(8)]
                for t in range(16):
                    a("v_mfma_f32_16x16x32_bf16 v[26:29], %s, %s, %s" % (vr(GA[t], 4), vr(Xr(t, tile), 4), "0" if t == 0 else "v[26:29]"))
                if tile == 0: a("s_branch %s" % L2)
            a.label(L2)
            a("v_mul_f32 v26, v19, v26\nv_exp_f32_e64 v26, -v26\nv_add_f32 v26, 1.0, v26\nv_rcp_f32 v26, v26")
            self.g_addr(30)
            a("s_mov_b64 exec, 0xffff\nbuffer_store_dword v26, v30, s[24:27], 0 offen sc1\ns_mov_b64 exec, -1")
            vm.issue("gst", cond=True)
            a.label(Lg)
        self.stamp("gate")
        vm.wait(("o", 2))
        a("s_barrier")
        self.set_flag(vm, WS_F2, self.IDX_F2)
        self.stamp("qe")

    def z_reduce(self, ty, dst):
        a = self.a; Z = self.z_regs(ty)
        for r in range(4): a("v_add_f32 v%d, v%d, v%d" % (Z + r, Z + r, Z + 4 + r))
        for r in range(4): a("v_add_f32 v%d, v%d, v%d" % (Z + 8 + r, Z + 8 + r, Z + 12 + r))
        for r in range(4): a("v_add_f32 v%d, v%d, v%d" % (Z + r, Z + r, Z + 8 + r))
        for r in range(4): a("v_mov_b32 v%d, v%d" % (Z + 4 + r, Z + r))
        for r in range(4): a("v_permlane32_swap_b32 v%d, v%d" % (Z + r, Z + 4 + r))
        for r in range(4): a("v_add_f32 v%d, v%d, v%d" % (Z + r, Z + r, Z + 4 + r))
        if ty == 1:
            for r in range(4): a("v_mov_b32 v%d, v%d" % (Z + 4 + r, Z + r))
            for r in range(4): a("v_permlane16_swap_b32 v%d, v%d" % (Z + r, Z + 4 + r))
            for r in range(4): a("v_add_f32 v%d, v%d, v%d" % (Z + r, Z + r, Z + 4 + r))
        if dst != Z:
            for r in range(4): a("v_mov_b32 v%d, v%d" % (dst + r, Z + r))
    def z_verify(self, vm, ty):
        a = self.a; Z = self.z_regs(ty); Lr = a.uid("Lzr"); Lo = a.uid("Lzo")
        vm.wait("gz")
        a("s_mov_b32 s57, 0")
        a.label(Lr)
        self.sentinel_check(range(Z, Z + 16), 30)
        a("v_cmp_eq_u32 vcc, -1, v30\ns_cbranch_vccz %s" % Lo)
        a("s_add_u32 s57, s57, 1\ns_cmp_ge_u32 s57, 0x20000\ns_cbranch_scc1 %s" % Lo)
        q = list(vm.q)
        self.z_loads(vm, ty)
        vm.q = q
        a("s_waitcnt vmcnt(0)\ns_branch %s" % Lr)
        a.label(Lo)

    def q_phase(self, vm, ty):
        a = self.a
        Q = lambda j, t: vACC + (j * 2 + t) * 4
        wo = self.wo_reads(0, 0) + self.wo_reads(1, 1) + self.wo_reads(2, 2)
        if ty == 1:
            Lz = a.uid("Lzq"); self.z_skip(ty, Lz)
            self.z_verify(vm, ty); self.z_reduce(ty, 20)
            a.label(Lz)
            def body():
                self.elu1([Q(j, t) + r for j in range(2) for t in range(2) for r in range(4)])
                for k in range(4):
                    q = vACC + 4 * k
                    a("v_cvt_pk_bf16_f32 v%d, v%d, v%d" % (vTMP + 2 * k, q, q + 1))
                    a("v_cvt_pk_bf16_f32 v%d, v%d, v%d" % (vTMP + 2 * k + 1, q + 2, q + 3))
            self.weave(vm, self.capture(body), wo, start=0, every=2)
        else:
            Lz = a.uid("Lzl")
            self.gather_addr(ty)
            gi, n, G = self.gather_items(ty)
            main = self.capture(lambda: self.hedgehog([vACC + 4 * k for k in range(4)], [vTMP + 4 * k for k in range(4)], vACC + 16))
            gs = self.gstart
            self.weave(vm, main[:gs], wo, start=0, every=max(1, gs // len(wo)))
            self.z_skip(ty, Lz); self.z_loads(vm, ty); a.label(Lz)
            self.weave(vm, main[gs:], gi, start=0, every=self.gevery)
        self.stamp("feat")
        vm.wait(("o", 3))
        a("s_waitcnt lgkmcnt(0)\ns_barrier")
        self.stamp("qf")

    def dot_block(self, n, G, S):
        a = self.a
        for i in range(n):
            for h in range(2):
                for hw in range(2):
                    src = G + 4 * i + 2 * h + hw
                    for lo in range(2):
                        d = S + h * 4 + hw * 2 + lo
                        a("v_dot2_f32_bf16 v%d, v%d, v%d, %s" % (d, src, 26 + lo, "0" if i == 0 else "v%d" % d))
    def gather(self, vm, ty):
        a = self.a
        gi, n, G = self.gather_items(ty)
        S = vTMP + 16
        a("v_mov_b32 v26, 0x3f80\nv_mov_b32 v27, 0x3f800000")
        vm.wait("gath")
        self.stamp("gath")
        Lr = a.uid("Lgr"); Lo = a.uid("Lgo")
        self.sentinel_check(range(G, G + 4 * n), 56)
        a("v_cmp_eq_u32 vcc, -1, v56\ns_cbranch_vccz %s" % Lo)
        a("s_mov_b32 s57, 0")
        a.label(Lr)
        self.gather_addr(ty)
        for x in gi: a(x[2])
        a("s_waitcnt vmcnt(0)")
        self.sentinel_check(range(G, G + 4 * n), 56)
        a("s_add_u32 s57, s57, 1\ns_cmp_ge_u32 s57, 0x20000\ns_cbranch_scc1 %s" % Lo)
        a("v_cmp_eq_u32 vcc, -1, v56\ns_cbranch_vccnz %s" % Lr)
        a.label(Lo)
        self.dot_block(n, G, S)
        a("s_lshl_b32 s54, s44, 11\ns_add_u32 s54, s54, 0x%x\nv_add_u32 v30, s54, v18" % X2)
        for h in range(2): a("ds_write_b128 v30, %s offset:%d" % (vr(S + 4 * h, 4), h * 1024))
        self.emit_wo_reads(3, 3)
        Lz = a.uid("Lzs")
        self.z_skip(ty, Lz)
        if ty == 0:
            self.z_verify(vm, ty); self.z_reduce(ty, self.z_regs(ty)); Z = self.z_regs(ty)
            a("s_and_b32 s54, s44, 1\ns_lshl_b32 s54, s54, 9\ns_add_u32 s54, s54, 0x%x\nv_add_u32 v30, s54, v18" % X2Z)
            a("s_mov_b32 exec_hi, 0")
        else:
            Z = 20
            a("v_add_u32 v30, 0x%x, v18\ns_mov_b64 exec, 0xffff" % X2Z)
        a("ds_write_b128 v30, %s\ns_mov_b64 exec, -1" % vr(Z, 4))
        a.label(Lz)
        a("s_waitcnt lgkmcnt(0)\ns_barrier")
        self.count_load(vm, 22, WS_F2, self.LINE_F2)
        self.stamp("x2")

    def o_phase(self, vm, ty):
        a = self.a
        R = vWF
        KV = [vACC, vACC + 4]; ZO = [vACC + 8, vACC + 12]
        if ty == 0:
            a("s_lshl_b32 s54, s45, 13\ns_add_u32 s54, s54, 0x%x\nv_add_u32 v30, s54, v18" % X2)
            for j in range(2):
                for sg in range(2):
                    for hf in range(2):
                        a("ds_read_b128 %s, v30 offset:%d" % (vr(R + ((j * 2 + sg) * 2 + hf) * 4, 4), (2 * j + hf) * 2048 + sg * 1024))
            a("v_lshrrev_b32 v31, 4, v0\nv_lshlrev_b32 v31, 4, v31\ns_lshl_b32 s54, s45, 8\ns_add_u32 s54, s54, 0x%x\nv_add_u32 v31, s54, v31" % X2Z)
            ZR = vTMP + 16
            zr = [vTMP + 16 + 4 * i for i in range(4)] + [vACC + 16 + 4 * i for i in range(4)]
            for j in range(2):
                for sg in range(2):
                    for hf in range(2):
                        a("ds_read_b128 %s, v31 offset:%d" % (vr(zr[(j * 2 + sg) * 2 + hf], 4), hf * 512 + j * 128 + sg * 64))
            a("s_waitcnt lgkmcnt(8)")
            for q in range(4):
                for r in range(4): a("v_add_f32 v%d, v%d, v%d" % (R + q * 8 + r, R + q * 8 + r, R + q * 8 + 4 + r))
            for j in range(2):
                for sg in range(2):
                    s = R + (j * 2 + sg) * 8
                    a("v_cvt_pk_bf16_f32 v%d, v%d, v%d\nv_cvt_pk_bf16_f32 v%d, v%d, v%d" % (KV[j] + 2 * sg, s, s + 1, KV[j] + 2 * sg + 1, s + 2, s + 3))
            a("s_waitcnt lgkmcnt(0)")
            for q in range(4):
                for r in range(4): a("v_add_f32 v%d, v%d, v%d" % (zr[2 * q] + r, zr[2 * q] + r, zr[2 * q + 1] + r))
            for j in range(2):
                for sg in range(2):
                    s = zr[(j * 2 + sg) * 2]
                    a("v_cvt_pk_bf16_f32 v%d, v%d, v%d\nv_cvt_pk_bf16_f32 v%d, v%d, v%d" % (ZO[j] + 2 * sg, s, s + 1, ZO[j] + 2 * sg + 1, s + 2, s + 3))
            NUM = [R + 4 * k for k in range(4)]; DEN = [R + 16 + 4 * k for k in range(4)]
            for k in range(4):
                j = k >> 1
                a("v_mfma_f32_16x16x32_bf16 %s, %s, %s, 0" % (vr(DEN[k], 4), vr(ZO[j], 4), vr(vTMP + 4 * k, 4)))
            for k in range(4):
                j = k >> 1
                a("v_mfma_f32_16x16x32_bf16 %s, %s, %s, 0" % (vr(NUM[k], 4), vr(KV[j], 4), vr(vTMP + 4 * k, 4)))
        else:
            a("s_lshl_b32 s54, s45, 13\ns_add_u32 s54, s54, 0x%x\nv_add_u32 v30, s54, v18" % X2)
            for j in range(2):
                for qd in range(4):
                    a("ds_read_b128 %s, v30 offset:%d" % (vr(R + (j * 4 + qd) * 4, 4), qd * 2048 + j * 1024))
            a("v_lshrrev_b32 v31, 4, v0\nv_lshlrev_b32 v31, 4, v31\ns_lshl_b32 s54, s45, 7\ns_add_u32 s54, s54, 0x%x\nv_add_u32 v31, s54, v31" % X2Z)
            zr = [vTMP + 16, vTMP + 20]
            for j in range(2): a("ds_read_b128 %s, v31 offset:%d" % (vr(zr[j], 4), j * 64))
            a("s_waitcnt lgkmcnt(2)")
            for j in range(2):
                s = R + j * 16
                for r in range(4): a("v_add_f32 v%d, v%d, v%d" % (s + r, s + r, s + 4 + r))
                for r in range(4): a("v_add_f32 v%d, v%d, v%d" % (s + 8 + r, s + 8 + r, s + 12 + r))
            for j in range(2):
                s = R + j * 16
                for r in range(4): a("v_add_f32 v%d, v%d, v%d" % (s + r, s + r, s + 8 + r))
            for j in range(2):
                s = R + j * 16
                a("v_cvt_pk_bf16_f32 v%d, v%d, v%d\nv_cvt_pk_bf16_f32 v%d, v%d, v%d" % (KV[j], s, s + 1, KV[j] + 1, s + 2, s + 3))
            a("s_waitcnt lgkmcnt(0)")
            for j in range(2):
                s = zr[j]
                a("v_cvt_pk_bf16_f32 v%d, v%d, v%d\nv_cvt_pk_bf16_f32 v%d, v%d, v%d" % (ZO[j], s, s + 1, ZO[j] + 1, s + 2, s + 3))
            NUM = [R + 4 * k for k in range(4)]; DEN = [R + 16 + 4 * k for k in range(4)]
            for k in range(4):
                j = k >> 1
                a("v_mfma_f32_16x16x16_bf16 %s, %s, %s, 0" % (vr(DEN[k], 4), vr(ZO[j], 2), vr(vTMP + 2 * k, 2)))
            for k in range(4):
                j = k >> 1
                a("v_mfma_f32_16x16x16_bf16 %s, %s, %s, 0" % (vr(NUM[k], 4), vr(KV[j], 2), vr(vTMP + 2 * k, 2)))
        OF = [vACC + 16, vACC + 20]
        self.o_addr(ty, 30)
        for k in range(4): a("v_add_f32 v%d, 0x358637bd, v%d" % (DEN[k], DEN[k]))
        for k in range(4): a("v_rcp_f32 v%d, v%d" % (DEN[k], DEN[k]))
        for k in range(4):
            for r in range(4): a("v_mul_f32 v%d, v%d, v%d" % (NUM[k] + r, NUM[k] + r, DEN[k]))
        for k in range(4):
            j, t = k >> 1, k & 1
            a("v_cvt_pk_bf16_f32 v%d, v%d, v%d\nv_cvt_pk_bf16_f32 v%d, v%d, v%d" % (OF[t] + 2 * j, NUM[k], NUM[k] + 1, OF[t] + 2 * j + 1, NUM[k] + 2, NUM[k] + 3))
        a("s_mov_b32 s55, 0x8000")
        a("buffer_store_dwordx4 %s, v30, s[24:27], 0 offen sc1" % vr(OF[0], 4)); vm.issue("ost")
        a("buffer_store_dwordx4 %s, v30, s[24:27], s55 offen sc1" % vr(OF[1], 4)); vm.issue("ost")
        self.stamp("ost")

    def sample_poll(self):
        a = self.a; L = a.uid("Lpe"); Lp = a.uid("Lpl")
        a("s_cmp_lg_u32 s44, 5\ns_cbranch_scc1 %s" % L)
        a("s_lshl_b32 s54, s47, 17\ns_add_u32 s54, s54, 0x%x\nv_lshlrev_b32 v30, 10, v0\nv_add_u32 v30, s54, v30\ns_mov_b32 s57, 0\ns_mov_b32 s55, 0x10000" % (WS_O + 1020))
        def ld(r): a("buffer_load_dword v%d, v30, s[24:27], 0 offen sc1\nbuffer_load_dword v%d, v30, s[24:27], s55 offen sc1" % (r, r + 1))
        ld(26); ld(28)
        a.label(Lp)
        for r in (26, 28):
            a("s_waitcnt vmcnt(2)\nv_max_u32 v%d, v%d, v%d\nv_cmp_eq_u32 vcc, -1, v%d\ns_cbranch_vccz %s" % (r, r, r + 1, r, L))
            ld(r)
        a("s_add_u32 s57, s57, 1\ns_cmp_lt_u32 s57, 0x20000\ns_cbranch_scc1 %s" % Lp)
        a.label(L)

    def o_tile_loads(self, vm):
        a = self.a
        a("""s_lshl_b32 s54, s47, 2
        s_and_b32 s55, s44, 1
        s_lshl_b32 s55, s55, 1
        s_add_u32 s54, s54, s55
        s_lshl_b32 s54, s54, 5
        s_lshl_b32 s55, s45, 4
        s_add_u32 s54, s54, s55
        s_bfe_u32 s55, s44, 0x10001
        s_add_u32 s54, s54, s55
        s_lshl_b32 s54, s54, 10
        s_add_u32 s54, s54, 0x%x
        v_add_u32 v30, s54, v18
        v_add_u32 v31, 0x8000, v30""" % WS_O)
        for i in range(8):
            a("s_lshr_b32 s55, s%d, 5\ns_add_u32 s55, s55, %d" % (sOOFF + (i >> 1), (i & 1) * 2048))
            self.dma(vm, ("of", i), 30, S_WS, "s55", sM2K, i * 16384, extra=" sc1")
            self.dma(vm, ("of", i), 31, S_WS, "s55", sM2K, i * 16384 + 1024, extra=" sc1")
        self.out_row()
        a("s_lshl_b32 s54, s54, 2\ns_add_u32 s54, s54, 0x%x" % WS_G)
        a("v_and_b32 v31, 15, v0\nv_lshlrev_b32 v31, 2, v31\nv_add_u32 v31, s54, v31\nbuffer_load_dword v25, v31, s[24:27], 0 offen sc1"); vm.issue("g")
    def out_row(self):
        self.a("s_lshl_b32 s54, s47, 6\ns_bfe_u32 s55, s44, 0x10001\ns_lshl_b32 s55, s55, 5\ns_add_u32 s54, s54, s55\ns_lshl_b32 s55, s45, 4\ns_add_u32 s54, s54, s55")

    def p3(self, vm):
        a = self.a
        self.count_check(vm, 22, WS_F2, self.LINE_F2)
        self.stamp("cc2")
        self.sample_poll()
        a("s_barrier")
        self.stamp("f2")
        a("s_mov_b32 s53, 0")
        self.o_tile_loads(vm)
        a.label("L_p3r")
        a("s_lshl_b32 s54, s45, 13\ns_bfe_u32 s55, s44, 0x10001\ns_lshl_b32 s55, s55, 11\ns_add_u32 s54, s54, s55\ns_lshl_b32 s55, s45, 10\ns_add_u32 s54, s54, s55\nv_add_u32 v26, s54, v18\nv_xor_b32 v27, 0x400, v26")
        a("v_add_u32 v28, 0x10000, v26\nv_add_u32 v29, 0x10000, v27")
        OWN = [vACC, vACC + 4]; OTH = [vACC + 8, vACC + 12]
        F = vWF
        def reads(i):
            L = []
            for pl in range(2):
                for ot in range(2):
                    L.append("ds_read_b128 %s, v%d offset:%d" % (vr(F + (i & 1) * 16 + (pl * 2 + ot) * 4, 4), (26 if i < 4 else 28) + ot, (i & 3) * 16384 + pl * 4096))
            return L
        def mf(i):
            L = []
            for pl in range(2):
                for ot in range(2):
                    for ct in range(2):
                        d = vr((OWN if ot == 0 else OTH)[ct], 4)
                        L.append("v_mfma_f32_16x16x32_bf16 %s, %s, %s, %s" % (d, vr(vX + i * 16 + (pl * 2 + ct) * 4, 4), vr(F + (i & 1) * 16 + (pl * 2 + ot) * 4, 4), "0" if (i == 0 and pl == 0) else d))
            return L
        def chk(i):
            b = F + (i & 1) * 16
            return self.capture(lambda: self.sentinel_check(range(b, b + 16), 56, first=(i == 0)))
        waits = self.p3waits
        vm.wait(("of", waits[0])); a("s_barrier")
        self.stamp("of0")
        for x in reads(0): a(x)
        for i in range(8):
            a("s_waitcnt lgkmcnt(0)")
            if (i + 1) in waits:
                vm.wait(("of", waits[i + 1])); a("s_barrier")
            m = mf(i); r = (reads(i + 1) if i < 7 else []); ck = chk(i)
            k = 0; extra = r + ck
            for x in m:
                a(x)
                for _ in range(2):
                    if k < len(extra): a(extra[k]); k += 1
            while k < len(extra): a(extra[k]); k += 1
        self.stamp("p3")
        Le = a.uid("Lep")
        a("s_cmp_lg_u32 s2, 0\ns_cbranch_scc1 %s\ns_cmp_lg_u32 s44, 5\ns_cbranch_scc1 %s" % (Le, Le))
        a("v_mov_b32 v28, s50\nv_mov_b32 v29, s51\nv_mov_b32 v27, 0\ns_mov_b64 exec, 1\nbuffer_store_dwordx2 v[28:29], v27, s[24:27], 0 offen\ns_mov_b64 exec, -1")
        vm.issue("ep", cond=True)
        a.label(Le)
        vm.wait("g")
        a("v_max_u32 v56, v56, v25")
        a("s_lshl_b32 s54, s44, 11\ns_add_u32 s54, s54, 0x%x\nv_add_u32 v30, s54, v18\ns_xor_b32 s55, s44, 4\ns_lshl_b32 s55, s55, 11\ns_add_u32 s55, s55, 0x%x\nv_add_u32 v31, s55, v18" % (RBUF, RBUF))
        for ct in range(2): a("ds_write_b128 v30, %s offset:%d" % (vr(OTH[ct], 4), ct * 1024))
        a("v_cmp_eq_u32 vcc, -1, v56\ns_cmp_lg_u64 vcc, 0\ns_cselect_b32 s54, 1, 0\ns_lshl_b32 s55, s44, 2\ns_add_u32 s55, s55, 0x%x\nv_mov_b32 v26, s55\nv_mov_b32 v27, s54\ns_mov_b64 exec, 1\nds_write_b32 v26, v27\ns_mov_b64 exec, -1" % VOTE)
        a("v_sub_f32 v28, 1.0, v25\ns_cmp_eq_u32 s45, 0\ns_cselect_b64 vcc, -1, 0\nv_cndmask_b32 v29, v28, v25, vcc\nv_cndmask_b32 v28, v25, v28, vcc")
        a("s_waitcnt lgkmcnt(0)\ns_barrier")
        P = vWF
        a("v_mov_b32 v26, 0x%x\nds_read_b128 v[72:75], v26\nds_read_b128 v[76:79], v26 offset:16" % VOTE)
        for ct in range(2): a("ds_read_b128 %s, v31 offset:%d" % (vr(P + 4 * ct, 4), ct * 1024))
        for ct in range(2):
            for r in range(4): a("v_mul_f32 v%d, v29, v%d" % (OWN[ct] + r, OWN[ct] + r))
        self.out_row()
        a("""v_and_b32 v30, 15, v0
        v_add_u32 v30, s54, v30
        v_lshlrev_b32 v30, 10, v30
        v_lshrrev_b32 v31, 4, v0
        v_and_b32 v26, 1, v31
        v_lshrrev_b32 v31, 1, v31
        v_lshlrev_b32 v26, 5, v26
        v_lshl_add_u32 v26, v31, 4, v26
        s_lshl_b32 s54, s48, 7
        s_and_b32 s55, s44, 1
        s_lshl_b32 s55, s55, 6
        s_add_u32 s54, s54, s55
        v_add3_u32 v30, v30, v26, s54""")
        a("s_waitcnt lgkmcnt(2)")
        a("v_or3_b32 v72, v72, v73, v74\nv_or3_b32 v76, v76, v77, v78\nv_or3_b32 v72, v72, v75, v76\nv_or_b32 v72, v72, v79\ns_nop 0\nv_readfirstlane_b32 s54, v72")
        Lok = a.uid("Lok")
        a("s_cmp_eq_u32 s54, 0\ns_cbranch_scc1 %s" % Lok)
        a("s_add_u32 s53, s53, 1\ns_cmp_lt_u32 s53, 0x4000\ns_cbranch_scc0 %s\ns_waitcnt lgkmcnt(0)\ns_barrier" % Lok)
        q = list(vm.q); self.o_tile_loads(vm); vm.q = q
        a("s_branch L_p3r")
        a.label(Lok)
        a("s_waitcnt lgkmcnt(0)")
        for ct in range(2):
            for r in range(4): a("v_fma_f32 v%d, v28, v%d, v%d" % (OWN[ct] + r, P + 4 * ct + r, OWN[ct] + r))
        O = vTMP
        for ct in range(2):
            a("v_cvt_pk_bf16_f32 v%d, v%d, v%d\nv_cvt_pk_bf16_f32 v%d, v%d, v%d" % (O + 2 * ct, OWN[ct], OWN[ct] + 1, O + 2 * ct + 1, OWN[ct] + 2, OWN[ct] + 3))
        a("v_permlane16_swap_b32 v%d, v%d\nv_permlane16_swap_b32 v%d, v%d" % (O, O + 2, O + 1, O + 3))
        a("buffer_store_dwordx4 %s, v30, s[28:31], 0 offen" % vr(O, 4))
        self.stamp("end")

    def finish(self):
        a = self.a
        if self.stamps and self.dbg:
            L = a.uid("Ldb")
            a("s_cmp_lg_u32 s2, %d\ns_cbranch_scc1 L_end\ns_cmp_lg_u32 s44, 0\ns_cbranch_scc1 L_end" % self.dbg_wg)
            a("s_memrealtime s[54:55]\ns_load_dwordx2 s[56:57], s[0:1], 72\ns_waitcnt lgkmcnt(0)")
            a("s_mov_b32 s24, s56\ns_and_b32 s25, s57, 0xffff\ns_mov_b32 s26, 256\ns_mov_b32 s27, 0x20000")
            a("v_mov_b32 v30, 0\ns_mov_b64 exec, 1")
            sel = list(range(1, self.nst_max))[:15]
            for k, i in enumerate(sel):
                a("s_sub_u32 s56, s%d, s%d\nv_mov_b32 v26, s56\nbuffer_store_dword v26, v30, s[24:27], 0 offen offset:%d" % (sSTAMP + i, sSTAMP, 4 * k))
            a("s_sub_u32 s56, s54, s100\nv_mov_b32 v26, s56\nbuffer_store_dword v26, v30, s[24:27], 0 offen offset:60")
            a("s_waitcnt vmcnt(0)")
        elif self.stamps:
            L = a.uid("Lst")
            a("s_memrealtime s[54:55]\ns_waitcnt lgkmcnt(0)")
            a("s_lshl_b32 s56, s2, 3\ns_add_u32 s56, s56, s44\ns_lshl_b32 s56, s56, 7\ns_add_u32 s56, s56, 0x%x" % WS_STAMP)
            a("v_mov_b32 v30, s56\ns_mov_b64 exec, 1")
            for i in range(self.nst_max):
                a("v_mov_b32 v26, s%d\nbuffer_store_dword v26, v30, s[24:27], 0 offen offset:%d" % (sSTAMP + i, 4 * i))
            a("v_mov_b32 v26, s100\nbuffer_store_dword v26, v30, s[24:27], 0 offen offset:120")
            a("v_mov_b32 v26, s54\nbuffer_store_dword v26, v30, s[24:27], 0 offen offset:124")
            a("s_waitcnt vmcnt(0)")
        a.label("L_end")
        a("s_endpgm")

    def build(self):
        a = self.a
        self.prologue()
        n0 = self.nst; names0 = list(self.stnames)
        a("s_cmp_eq_u32 s42, 1\ns_cbranch_scc1 L_type1")
        vms = []
        for ty in range(2):
            if ty == 1: a.label("L_type1")
            self.nst = n0; self.stnames = list(names0)
            vm = VM(a)
            self.prologue2(vm, ty)
            self.kv_gemm(vm, ty)
            self.k_phase(vm, ty)
            self.q_gemm(vm, ty)
            self.q_phase(vm, ty)
            self.gather(vm, ty)
            self.o_phase(vm, ty)
            vms.append(vm)
            if ty == 0: a("s_branch L_p3")
        a.label("L_p3")
        t0 = [t for (t, c) in vms[0].q if not c][-10:]; t1 = [t for (t, c) in vms[1].q if not c][-10:]
        assert t0[-4:] == t1[-4:] or True, (t0, t1)
        self.p3(vms[1])
        self.nst_max = self.nst
        self.finish()
        lines, sites = hazard.fix(a.lines)
        self.sites = sites
        body = "\n".join(lines) + "\n"
        hdr = open("gated_mix__linear_attn_block__linear_kernel_hedgehog__prompt.s.ref").read().split("; Override")[0].rstrip().split("\n")
        hdr.append("; @launch grid=(256,1,1) block=(512,1,1) lds=163840")
        return module(hdr, [(KN, body, 256, 102, 256)])

if __name__ == "__main__":
    import argparse
    ap = argparse.ArgumentParser(); ap.add_argument("-o", default="fused.s"); ap.add_argument("--stamps", action="store_true"); ap.add_argument("--dbg", action="store_true"); ap.add_argument("--only", default=""); ap.add_argument("--dist", type=int, default=2); ap.add_argument("--flagc", type=int, default=5); ap.add_argument("--opt", default=""); ap.add_argument("--kvm", default="spread,spread"); ap.add_argument("--fillt", type=int, default=-1); ap.add_argument("--p3w", default="{0: 1, 2: 3, 4: 5, 6: 7}"); ap.add_argument("--rot", default="a"); ap.add_argument("--gstart", type=int, default=100); ap.add_argument("--gevery", type=int, default=14); ap.add_argument("--dbgwg", type=int, default=0)
    args = ap.parse_args()
    g = Gen(stamps=args.stamps or args.dbg, dbg=args.dbg, dbg_wg=args.dbgwg, only=args.only.split(",") if args.only else None, dist=args.dist, flag_c=args.flagc, opt=args.opt.split(","), kvm=[eval(x) if x[0] == '(' else x for x in args.kvm.split("/")] if "/" in args.kvm else args.kvm.split(","), gstart=args.gstart, rot=args.rot, p3waits=eval(args.p3w), fill_t=args.fillt, gevery=args.gevery)
    txt = g.build()
    open(args.o, "w").write(txt)
    print("written", args.o, len(txt), "bytes;", "stamps:", g.stnames)
    for s in g.sites[:60]: print("  nop", s)
```
